```python
import torch

def _softmax(x, axis=-1):
    return torch.softmax(x, dim=axis)

def _gelu(x):
    return torch.nn.functional.gelu(x, approximate='tanh')

def _silu(x):
    return torch.nn.functional.silu(x)

def _sigmoid(x):
    return torch.sigmoid(x)

def _layernorm(x, axis=-1, eps=1e-05):
    m = x.mean(dim=axis, keepdim=True)
    v = x.var(dim=axis, keepdim=True, unbiased=False)
    return (x - m) / torch.sqrt(v + eps)

def _scatter_add(tgt, idx, src, axis=0):
    return tgt.clone().index_add_(axis, idx, src)

def _segment_sum(src, seg, n):
    out = torch.zeros((n,) + src.shape[1:], dtype=src.dtype)
    return out.index_add_(0, seg, src)

def _pad(x, pw):
    flat = tuple((v for pair in reversed(pw) for v in pair))
    return torch.nn.functional.pad(x, flat)
kernel_name = 'standalone__window_attn_davit__vision'

def setup_inputs():

    _w = lambda a: (lambda t: t.to(torch.bfloat16) if t.is_floating_point() else t)(torch.as_tensor(a))
    HW = 512
    C0 = 96
    ws = 7
    nh = 4
    H = W = max(HW // ws * ws, ws)
    C = max(C0 // nh * nh, nh)
    k = 3
    return {'x': _w((lambda *s: torch.randn(*s, dtype=torch.bfloat16) * 1.6)(1, H, W, C)), 'dw_pe': _w((lambda *s: torch.randn(*s, dtype=torch.bfloat16) * 1.6)(k, k, C) * 0.1), 'w_qkv': _w((lambda *s: torch.randn(*s, dtype=torch.bfloat16) * 1.6)(C, 3 * C) * C ** (-0.5)), 'w_o': _w((lambda *s: torch.randn(*s, dtype=torch.bfloat16) * 0.4)(C, C) * C ** (-0.5))}

def reference(x, dw_pe, w_qkv, w_o):
    B, H, W, C = x.shape
    ws = 7
    nh = 4
    dh = C // nh
    kk = dw_pe.shape[0]
    pad = kk // 2
    xp = _pad(x, ((0, 0), (pad, pad), (pad, pad), (0, 0)))
    pe = torch.zeros_like(x)
    for i in range(kk):
        for j in range(kk):
            pe = pe + xp[:, i:i + H, j:j + W, :] * dw_pe[i, j][None, None, None, :]
    x0 = x + pe
    h = _layernorm(x0, axis=-1)
    hw = h.reshape(B, H // ws, ws, W // ws, ws, C)
    hw = (lambda x, *d: x.permute(*d))(hw, 0, 1, 3, 2, 4, 5)
    hw = hw.reshape(-1, ws * ws, C)
    qkv = (hw @ w_qkv).reshape(-1, ws * ws, 3, nh, dh)
    q = qkv[:, :, 0].clone()
    k = qkv[:, :, 1].clone()
    v = qkv[:, :, 2].clone()
    scale = dh ** (-0.5)
    attn = torch.einsum('wnhd,wmhd->whnm', q, k) * scale
    attn = _softmax(attn, axis=-1)
    out = torch.einsum('whnm,wmhd->wnhd', attn, v)
    out = out.reshape(-1, ws * ws, C) @ w_o
    out = out.reshape(B, H // ws, W // ws, ws, ws, C)
    out = (lambda x, *d: x.permute(*d))(out, 0, 1, 3, 2, 4, 5)
    out = out.reshape(B, H, W, C)
    return x0 + out
```

```python
import re

class R:
    __slots__=("k","i","n")
    def __init__(s,k,i,n=1): s.k=k; s.i=i; s.n=n
    def __str__(s):
        return f"{s.k}{s.i}" if s.n==1 else f"{s.k}[{s.i}:{s.i+s.n-1}]"
    def regs(s): return {f"{s.k}{s.i+j}" for j in range(s.n)}
    def __getitem__(s,j):
        if isinstance(j,slice):
            a=j.start or 0; b=j.stop if j.stop is not None else s.n
            assert 0<=a<b<=s.n
            return R(s.k,s.i+a,b-a)
        assert 0<=j<s.n
        return R(s.k,s.i+j,1)
def V(i,n=1):
    assert 0<=i and i+n<=256, (i,n)
    if n>1: assert i%2==0, ("unaligned tuple",i,n)
    return R("v",i,n)
def S(i,n=1): return R("s",i,n)
class Sp:
    def __init__(s,name): s.name=name
    def __str__(s): return s.name
    def regs(s): return {s.name}
VCC=Sp("vcc"); EXEC=Sp("exec"); M0=Sp("m0")
class Neg:
    def __init__(s,r): s.r=r
    def __str__(s): return "-"+str(s.r)
    def regs(s): return s.r.regs()

def regs_of(x):
    return x.regs() if hasattr(x,"regs") else set()
def fmt(x):
    if isinstance(x,int):
        if -16<=x<=64: return str(x)
        return hex(x & 0xffffffff)
    return str(x)

class Ins:
    __slots__=("text","kind","rd","wr","srcc","cost","states","prio","idx","sub","tag","dtuple")
    def __init__(s,text,kind,rd=(),wr=(),srcc=(),cost=4,states=1,sub=None,tag=None):
        s.text=text; s.kind=kind; s.rd=set(rd); s.wr=set(wr); s.srcc=set(srcc)
        s.cost=cost; s.states=states; s.sub=sub; s.tag=tag; s.prio=0

VALU_KINDS=("valu","trans","dpp","perm","rdlane")
MF=("mfma","smfmac")
TRANS_OPS=("v_exp_f32","v_rcp_f32","v_rsq_f32","v_log_f32","v_sqrt_f32","v_rcp_iflag_f32")

class Prog:
    def __init__(s):
        s.cur=[]
        s.out=[]
        s.LDS_LAT=128
    def add(s,i): s.cur.append(i); return i
    def v(s,op,dst,*src,mod="",extra_rd=(),extra_wr=()):
        kind="trans" if op in TRANS_OPS else "valu"
        cost=8 if kind=="trans" else 4
        rd=set().union(*[regs_of(x) for x in src]) if src else set()
        wr=set(regs_of(dst))
        if op in("v_fmac_f32",): rd|=wr
        if "dpp" in op: kind="dpp"
        if op.startswith("v_permlane"):
            kind="perm"; cost=8; rd|=wr; wr|=rd
        if op in("v_readfirstlane_b32","v_readlane_b32"): kind="rdlane"
        rd|=set(extra_rd); wr|=set(extra_wr)
        t=f"{op} {fmt(dst)}"+"".join(", "+fmt(x) for x in src)+((" "+mod) if mod else "")
        return s.add(Ins(t,kind,rd,wr,cost=cost))
    def s(s,op,dst,*src,scc_w=None,scc_r=None):
        rd=set().union(*[regs_of(x) for x in src]) if src else set()
        wr=set(regs_of(dst))
        if op.startswith("s_cmp"):
            rd|=wr; wr={"scc"}
        else:
            if scc_w is None: scc_w = not (op.startswith("s_mov") or op.startswith("s_cselect") or op.startswith("s_mul") or op.startswith("s_movk"))
            if scc_w: wr.add("scc")
        if op.startswith("s_cselect") or op in("s_addc_u32","s_subb_u32"): rd.add("scc")
        t=f"{op} {fmt(dst)}"+"".join(", "+fmt(x) for x in src)
        return s.add(Ins(t,"salu",rd,wr))
    def mfma(s,d,a,b,c):
        rd=regs_of(a)|regs_of(b)|regs_of(c)
        i=Ins(f"v_mfma_f32_16x16x32_bf16 {d}, {a}, {b}, {fmt(c)}","mfma",rd,regs_of(d),srcc=regs_of(c),cost=8)
        return s.add(i)
    def smfmac(s,d,a,b,idx):
        rd=regs_of(a)|regs_of(b)|regs_of(d)|regs_of(idx)
        i=Ins(f"v_smfmac_f32_16x16x64_bf16 {d}, {a}, {b}, {idx}","smfmac",rd,regs_of(d),srcc=regs_of(d),cost=12)
        return s.add(i)
    def cvt(s,d,x,y): return s.v("v_cvt_pk_bf16_f32",d,x,y)
    def dsr(s,op,d,addr,off=0,mem=()):
        assert 0<=off<65536,off
        return s.add(Ins(f"{op} {d}, {addr}"+(f" offset:{off}" if off else ""),"dsr",regs_of(addr)|set(mem),regs_of(d),cost=4))
    def dsw(s,op,addr,src,off=0,mem=()):
        assert 0<=off<65536,off
        return s.add(Ins(f"{op} {addr}, {src}"+(f" offset:{off}" if off else ""),"dsw",regs_of(addr)|regs_of(src),set(mem),cost=4))
    def bperm(s,d,addr,src):
        return s.add(Ins(f"ds_bpermute_b32 {d}, {addr}, {src}","dsr",regs_of(addr)|regs_of(src),regs_of(d),cost=4))
    def dma(s,voff,srd,soff,off=0):
        return s.add(Ins(f"buffer_load_dwordx4 {voff}, {srd}, {fmt(soff)} offen"+(f" offset:{off}" if off else "")+" lds","dma",
                         regs_of(voff)|regs_of(srd)|regs_of(soff)|{"m0","VM"},{"VM"},cost=4))
    def vst(s,op,data,voff,srd,soff,off=0,mod=""):
        return s.add(Ins(f"{op} {data}, {voff}, {srd}, {fmt(soff)} offen"+(f" offset:{off}" if off else "")+((" "+mod) if mod else ""),"vst",
                         regs_of(data)|regs_of(voff)|regs_of(srd)|regs_of(soff)|{"VM"},{"VM"},cost=4,tag=data))
    def vld(s,op,d,voff,srd,soff,off=0):
        return s.add(Ins(f"{op} {d}, {voff}, {srd}, {fmt(soff)} offen"+(f" offset:{off}" if off else ""),"vld",
                         regs_of(voff)|regs_of(srd)|regs_of(soff)|{"VM"},regs_of(d)|{"VM"},cost=4))
    def raw(s,text,kind="other",rd=(),wr=(),states=1):
        return s.add(Ins(text,kind,rd,wr,states=states))
    def bundle(s,fn):
        save=s.cur; s.cur=[]
        fn()
        sub=s.cur; s.cur=save
        rd=set(); wr=set()
        for i in sub:
            rd|=(i.rd-wr); wr|=i.wr
        rd.discard("exec"); wr.discard("exec")
        b=Ins("<bundle>","bundle",rd,wr,cost=sum(i.cost for i in sub),sub=sub)
        return s.add(b)
    def flush(s,sched=True,mf_gap=16,window=None):
        ins=s.cur; s.cur=[]
        if sched and len(ins)>1: ins=s.schedule(ins,mf_gap,window)
        for i in ins:
            if i.kind=="bundle": s.out.extend(i.sub)
            else: s.out.append(i)
    def label(s,name):
        assert not s.cur
        s.out.append(Ins(name+":","label",states=0))
    def branch(s,op,target):
        assert not s.cur
        rd={"scc"} if "scc" in op else ({"vcc"} if "vcc" in op else set())
        s.out.append(Ins(f"{op} {target}","branch",rd))
    def barrier(s,vm=None):
        assert not s.cur
        s.out.append(Ins("s_waitcnt lgkmcnt(0)"+(f" vmcnt({vm})" if vm is not None else ""),"wait0"))
        s.out.append(Ins("s_barrier","other"))
    def waitv(s,n):
        assert not s.cur
        s.out.append(Ins(f"s_waitcnt vmcnt({n})","other"))
    def waitl0(s):
        assert not s.cur
        s.out.append(Ins(f"s_waitcnt lgkmcnt(0)","wait0"))
    def comment(s,t):
        assert not s.cur
        s.out.append(Ins("; "+t,"label",states=0,tag="comment"))

    def lat(s,p,c,reg,typ):
        pk=p.kind
        if typ=="raw":
            if pk=="dsr": return s.LDS_LAT
            if pk in MF:
                if c.kind in MF and reg in c.srcc and c.srcc==p.wr: return 16
                return 44
            if pk in VALU_KINDS or pk=="bundle":
                if c.kind in MF: return p.cost+8
                if c.kind in("dpp","perm"): return p.cost+8
                if pk=="trans": return p.cost+4
                if reg[0]=="s" or reg=="vcc": return p.cost+20
                return p.cost
            return p.cost
        if typ=="war":
            if pk in MF and reg in p.srcc and c.kind not in MF: return 24
            if pk=="vst": return 12
            return p.cost
        if typ=="waw":
            if pk in MF and c.kind not in MF: return 44
            if pk=="dsr": return s.LDS_LAT
            return p.cost
    def schedule(s,ins,mf_gap,window):
        n=len(ins)
        preds=[dict() for _ in range(n)]
        lastw={}; readers={}
        for k,i in enumerate(ins):
            for r in i.rd:
                if r in lastw:
                    j=lastw[r]; preds[k][j]=max(preds[k].get(j,0),s.lat(ins[j],i,r,"raw"))
            for r in i.wr:
                if r in lastw:
                    j=lastw[r]; preds[k][j]=max(preds[k].get(j,0),s.lat(ins[j],i,r,"waw"))
                for j in readers.get(r,()):
                    if j!=k: preds[k][j]=max(preds[k].get(j,0),s.lat(ins[j],i,r,"war"))
            for r in i.rd: readers.setdefault(r,[]).append(k)
            for r in i.wr: lastw[r]=k; readers[r]=[]
        succs=[[] for _ in range(n)]
        for k in range(n):
            for j,l in preds[k].items(): succs[j].append((k,l))
        cp=[0]*n
        for k in range(n-1,-1,-1):
            cp[k]=ins[k].cost+max([l+cp[c] for c,l in succs[k]],default=0)
        npred=[len(p) for p in preds]
        ready_t=[0]*n
        cand=[k for k in range(n) if npred[k]==0]
        t=0; tm=0; order=[]; lds_out=[]
        done=[False]*n; lowest=0
        while cand:
            while lowest<n and done[lowest]: lowest+=1
            lds_out=[x for x in lds_out if x>t]
            def rt(k):
                r=ready_t[k]
                if ins[k].kind in MF: r=max(r,tm)
                if ins[k].kind in("dsr","dsw") and len(lds_out)>=12: r=max(r,sorted(lds_out)[len(lds_out)-12])
                return r
            cc=cand if window is None else ([k for k in cand if k<lowest+window] or cand)
            rdy=[k for k in cc if rt(k)<=t]
            if not rdy:
                k=min(cc,key=lambda k:(rt(k),k)); t=rt(k)
            else:
                def key(k):
                    kd=ins[k].kind
                    cls=0 if kd in MF else (1 if kd in("dsr","dma") else 2)
                    return (cls,-(cp[k]+ins[k].prio),k)
                k=min(rdy,key=key)
            i=ins[k]; order.append(i); cand.remove(k); done[k]=True
            if i.kind in MF: tm=t+mf_gap
            if i.kind in("dsr","dsw"): lds_out.append(t+s.LDS_LAT)
            for c,l in succs[k]:
                ready_t[c]=max(ready_t[c],t+l); npred[c]-=1
                if npred[c]==0: cand.append(c)
            t+=i.cost
        assert len(order)==n
        s.last_len=t
        return order

    def need_states(s,p,c):
        need=0
        pk=p.kind; ck=c.kind
        cv = ck in VALU_KINDS
        if pk in VALU_KINDS:
            vw={r for r in p.wr if r[0]=="v" and r!="vcc"}
            sw={r for r in p.wr if r[0]=="s" or r=="vcc"}-{"scc"}
            if vw&c.rd:
                if ck in MF: need=max(need,2)
                if ck in("dpp","perm"): need=max(need,2)
                if ck=="rdlane": need=max(need,1)
                if pk=="trans" and cv and ck!="trans": need=max(need,1)
                if pk=="trans" and not cv: need=max(need,1)
            if sw&c.rd:
                if cv: need=max(need,4 if ck=="rdlane" else 2)
                if ck in("dma","vst","vld"): need=max(need,5)
                if ck in("salu","branch"): need=max(need,5 if ck=="branch" else 2)
        if pk in MF:
            if ck in MF:
                if p.wr&c.srcc:
                    if c.srcc!=p.wr: need=max(need,6)
                if p.wr&(c.rd-c.srcc): need=max(need,8)
                if ck=="mfma" and False: pass
            else:
                if p.wr&(c.rd|c.wr): need=max(need,8)
                if cv and (p.srcc&c.wr): need=max(need,3)
        if pk=="salu" and "m0" in p.wr and ck=="dma": need=max(need,1)
        if pk=="vst" and p.tag is not None and p.tag.n>=3 and (p.tag.regs()&c.wr): need=max(need,2)
        return need
    def finalize(s):
        assert not s.cur
        res=[]
        hist=[]
        pend=[]
        def emit(i):
            res.append(i)
        def dist_pad(c,allc=False):
            d=0; pad=0
            for p in reversed(res):
                if p.kind=="label" and p.tag!="comment": break
                if d>=8: break
                if allc:
                    nd = 8 if p.kind in MF else (5 if p.kind in VALU_KINDS and any(r[0]=="s" or r=="vcc" for r in p.wr) else (2 if p.kind in VALU_KINDS or p.kind=="vst" else (1 if p.kind=="salu" and "m0" in p.wr else 0)))
                else:
                    nd=s.need_states(p,c)
                if nd>d: pad=max(pad,nd-d)
                d+=p.states
            return pad
        for i in s.out:
            if i.kind=="label":
                if i.tag!="comment":
                    pad=dist_pad(None,True)
                    if pad: emit(Ins(f"s_nop {pad-1}","nop",states=pad))
                    assert not pend, ("lds ops outstanding at label",i.text)
                emit(i); continue
            if i.kind=="wait0":
                pend=[]; emit(i); continue
            touch=i.rd|i.wr
            last=-1
            for k,d in enumerate(pend):
                if d&touch: last=k
            if last>=0:
                nleft=len(pend)-1-last
                emit(Ins(f"s_waitcnt lgkmcnt({nleft})","other"))
                pend=pend[last+1:]
            if i.kind in("dsr","dsw") and len(pend)>=15:
                emit(Ins(f"s_waitcnt lgkmcnt(13)","other")); pend=pend[len(pend)-13:]
            if i.kind=="branch":
                pad=max(dist_pad(i), dist_pad(None,True)-1)
                assert not pend or i.tag=="ldsok", ("lds ops outstanding at branch",i.text)
            else:
                pad=dist_pad(i)
            if pad>0: emit(Ins(f"s_nop {pad-1}","nop",states=pad))
            emit(i)
            if i.kind=="dsr": pend.append({r for r in i.wr if r[0]=="v"})
            if i.kind=="dsw": pend.append(set())
        return res
    def text(s):
        res=s.finalize()
        lines=[]
        for i in res:
            lines.append(i.text if i.kind=="label" else "    "+i.text)
        s.final=res
        return "\n".join(lines)+"\n"
```

```python
import sys, math, struct
from asmlib import *

OPT=dict(dump=None, prioA=0, prioT=0, force_slow=False, lat=128, thr=2.0**40)
for a in sys.argv[1:]:
    if "=" in a:
        k,v=a.split("=",1); OPT[k]=eval(v)
OUT=OPT.get("out","standalone__window_attn_davit__vision.s")
KN="standalone__window_attn_davit__vision_kernel"

def f2u(f): return struct.unpack("<I",struct.pack("<f",f))[0]
ROWB=511*192; BIAS=ROWB+192; XBYTES=50135232
NWIN=21; NWG=254
c_scale=(24**-0.5)*math.log2(math.e)
XS=17408; XSL=[0,XS,2*XS]; XX=3*XS
R1=58560
HX=0; XBX0=3072; HS=[6144,24576,33792]; XBS=[15360,43008,52224]; XBX1=61440
R2=R1+64512
OS=[0,9216,18432]; OX=27648
WSTG=R1+24576; WOSTG=WSTG+55296; LDS_TOTAL=WOSTG+18432
assert LDS_TOTAL<=163840

XTOK=(2,4)
byres={}
for y in range(7):
    for x in range(7):
        if (y,x)==XTOK: continue
        byres.setdefault((9*y+x)%16,[]).append((y,x))
assert all(len(v)==3 for v in byres.values()) and len(byres)==16
G0=[0,1,2,3,12,13,14,15]; G1=[4,5,6,7,8,9,10,11]
TOK=[[None]*16 for _ in range(3)]
for T in range(3):
    ev=sorted([byres[r][T] for r in range(0,16,2)]); od=sorted([byres[r][T] for r in range(1,16,2)])
    for c,t in zip(G0,ev): TOK[T][c]=t
    for c,t in zip(G1,od): TOK[T][c]=t
def nib(vals): return sum((v&15)<<(4*i) for i,v in enumerate(vals))
YT=[nib([t[0] for t in TOK[T]]) for T in range(3)]
XT=[nib([t[1] for t in TOK[T]]) for T in range(3)]
def lanemask(f): return sum(1<<l for l in range(64) if f(l))

P=Prog(); P.LDS_LAT=OPT["lat"]
SRDX=S(4,4); SRDO=S(8,4); SRDW=S(12,4)
sWV=S(30); sQ=S(31); sWY0=S(32); sWX0=S(33); sIDX0=S(34); sMAG=S(35); sWD=S(36); sG=S(37); sK=S(38)
sT0,sT1,sT2,sT3,sT4,sT5=[S(40+i) for i in range(6)]
sOFF=S(46); sCLS=S(47); sCUR=S(48); sOFFS=S(49); sDX=S(50); sTHR=S(51); sOFFX=S(52); sM0=S(53)
sXO=[S(54),S(55),S(56)]
MK=[S(60+2*i,2) for i in range(12)]
sTAB=S(84,2); sTAB2=S(86,2)

def smov64(dst,val):
    P.s("s_mov_b32",dst[0],val&0xffffffff); P.s("s_mov_b32",dst[1],(val>>32)&0xffffffff)

def win_off(nreg,add,dst,cls=None,inval=None):
    P.s("s_add_i32",sT0,nreg,add)
    P.s("s_add_i32",sT1,sT0,sIDX0)
    P.s("s_mul_i32",sT2,sT1,sMAG)
    P.s("s_lshr_b32",sT2,sT2,16)
    P.s("s_mul_i32",sT3,sT2,sWD)
    P.s("s_sub_i32",sT1,sT1,sT3)
    P.s("s_add_i32",sT2,sT2,sWY0)
    P.s("s_add_i32",sT1,sT1,sWX0)
    P.s("s_mul_i32",dst,sT2,7*ROWB)
    P.s("s_mul_i32",sT3,sT1,7*192)
    P.s("s_add_i32",dst,dst,sT3)
    if cls is not None:
        P.s("s_cmp_eq_u32",sT2,0);  P.s("s_cselect_b32",cls,17,16)
        P.s("s_cmp_eq_u32",sT2,72); P.s("s_cselect_b32",sT3,2,0); P.s("s_or_b32",cls,cls,sT3)
        P.s("s_cmp_eq_u32",sT1,0);  P.s("s_cselect_b32",sT3,4,0); P.s("s_or_b32",cls,cls,sT3)
        P.s("s_cmp_eq_u32",sT1,72); P.s("s_cselect_b32",sT3,8,0); P.s("s_or_b32",cls,cls,sT3)
    P.s("s_cmp_lt_u32",sT0,NWIN); P.s("s_cselect_b32",sT2,sT2,100)
    P.s("s_cmp_lt_u32",sT2,73)
    P.s("s_cselect_b32",dst,dst,0 if inval is None else inval)

dumpcnt=[0]
def barrier(name,vm=None):
    P.barrier(vm)
    if OPT["dump"]==name:
        P.branch("s_branch","L_dump")

P.label(KN)
P.s("s_cmp_ge_u32",S(2),256); P.flush(False); P.branch("s_cbranch_scc1","L_end")
P.raw("s_load_dwordx8 s[16:23], s[0:1], 0",wr={f"s{i}" for i in range(16,24)})
P.raw("s_load_dwordx4 s[24:27], s[0:1], 32",wr={f"s{i}" for i in range(24,28)})
P.raw("s_load_dwordx2 s[28:29], s[0:1], 48",wr={"s28","s29"})
P.s("s_and_b32",sT0,S(2),7); P.s("s_lshl_b32",sT0,sT0,5); P.s("s_lshr_b32",sT1,S(2),3); P.s("s_add_u32",sQ,sT0,sT1)
P.s("s_cmp_ge_u32",sQ,NWG); P.flush(False); P.branch("s_cbranch_scc1","L_end")
vL=V(255)
P.v("v_lshrrev_b32",V(254),6,V(0)); P.v("v_and_b32",vL,63,V(0)); P.v("v_readfirstlane_b32",sWV,V(254))
P.s("s_mul_i32",sT0,sQ,898); P.s("s_lshr_b32",sT0,sT0,16)
P.s("s_mul_i32",sT1,sT0,73); P.s("s_sub_u32",sT1,sQ,sT1)
P.s("s_mul_i32",sWX0,sT0,21)
P.s("s_mul_i32",sT2,sT1,21)
P.s("s_cmp_eq_u32",sT0,3)
P.s("s_cselect_b32",sWY0,0,sT1); P.s("s_cselect_b32",sIDX0,sT2,0); P.s("s_cselect_b32",sMAG,6554,0); P.s("s_mov_b32",sWD,10)
P.flush(False); P.waitl0()
P.s("s_sub_u32",SRDX[0],S(16),BIAS); P.s("s_subb_u32",SRDX[1],S(17),0); P.s("s_mov_b32",SRDX[2],XBYTES+BIAS); P.s("s_mov_b32",SRDX[3],0x20000)
P.s("s_mov_b32",SRDO[0],S(24)); P.s("s_mov_b32",SRDO[1],S(25)); P.s("s_mov_b32",SRDO[2],XBYTES); P.s("s_mov_b32",SRDO[3],0x20000)
P.s("s_mov_b32",SRDW[3],0x20000)
P.s("s_cmp_ge_u32",sWV,4); P.flush(False); P.branch("s_cbranch_scc1","L_T")

WQK=lambda f,j: V(12*f+4*j,4)
WV=lambda d,j: V(36+12*d+4*j,4)
VV=lambda w,d,ks: V(60+16*w+8*d+4*ks,4)
KT=lambda T: V(108+4*T,4)
QT=lambda T: V(124+4*T,4)
QX=lambda w: V(136+4*w,4)
SX=lambda kt: V(148+4*kt,4)
ONES=V(164,4)
CM=lambda w: V(168+2*w,4)
aH=V(169); aO1=V(171); aO2=V(173); vCHK=V(175)
HB=lambda b,j: V(176+12*b+4*j,4)
POOL=200
QKV=lambda b,f: V(POOL+20*b+4*f,4)
SA=lambda b,kt: V(POOL+16*b+4*kt,4)
OA=lambda b,d: V(POOL+32+8*b+4*d,4)
PB=lambda b,ks: V(176+8*b+4*ks,4)
TMP=lambda i: V(POOL+48+i)
OPK=lambda b: V(192+4*b,4)

def a_prologue():
    P.v("v_lshlrev_b32",V(200),4,vL)
    P.s("s_mov_b32",SRDW[0],S(20)); P.s("s_mov_b32",SRDW[1],S(21)); P.s("s_mov_b32",SRDW[2],55296)
    P.s("s_mul_i32",sT0,sWV,1024)
    for n in range(14):
        P.s("s_add_u32",sT1,sT0,4096*n)
        P.s("s_add_u32",sT2,sT1,WSTG)
        if n==13:
            P.s("s_cmp_ge_u32",sWV,2); P.s("s_cselect_b32",sT3,2048,0)
            P.s("s_sub_u32",sT1,sT1,sT3); P.s("s_sub_u32",sT2,sT2,sT3)
        P.s("s_mov_b32",M0,sT2)
        P.dma(V(200),SRDW,sT1)
    P.s("s_mov_b32",SRDW[0],S(22)); P.s("s_mov_b32",SRDW[1],S(23)); P.s("s_mov_b32",SRDW[2],18432)
    for n in range(5):
        P.s("s_add_u32",sT1,sT0,4096*n)
        P.s("s_add_u32",sT2,sT1,WOSTG)
        if n==4:
            P.s("s_cmp_ge_u32",sWV,2); P.s("s_cselect_b32",sT3,2048,0)
            P.s("s_sub_u32",sT1,sT1,sT3); P.s("s_sub_u32",sT2,sT2,sT3)
        P.s("s_mov_b32",M0,sT2)
        P.dma(V(200),SRDW,sT1)
    g=V(201); t=V(202); r=V(203); c=V(204); a0=V(205); aZ=V(206); aY=V(207); aV1=V(208); x=V(209); y=V(210)
    P.v("v_lshrrev_b32",g,4,vL); P.v("v_and_b32",t,15,vL); P.v("v_lshrrev_b32",r,2,t); P.v("v_and_b32",c,3,vL)
    P.v("v_lshrrev_b32",x,1,g); P.v("v_lshlrev_b32",x,4,x); P.v("v_and_b32",y,1,g); P.v("v_lshlrev_b32",y,2,y)
    P.v("v_add3_u32",x,x,y,r); P.v("v_mul_u32_u24",x,576,x)
    P.s("s_mul_i32",sT0,sWV,48); P.s("s_add_u32",sT0,sT0,WSTG)
    P.v("v_add_u32",x,sT0,x)
    P.v("v_lshl_add_u32",a0,c,3,x)
    P.v("v_lshrrev_b32",y,1,c); P.v("v_lshl_add_u32",aV1,y,3,x); P.v("v_add_u32",aV1,32,aV1)
    P.v("v_and_b32",y,1,c); P.v("v_mul_u32_u24",y,192,y)
    P.v("v_add_u32",aZ,aV1,y)
    P.v("v_sub_u32",aY,aV1,y); P.v("v_add_u32",aY,192,aY)
    P.v("v_add_u32",aH,R1,V(200))
    P.s("s_lshr_b32",sT0,sWV,1); P.s("s_mul_i32",sT0,sT0,1024); P.s("s_and_b32",sT1,sWV,1); P.s("s_lshl_b32",sT1,sT1,3)
    P.s("s_add_u32",sT0,sT0,sT1); P.s("s_add_u32",sT0,sT0,R2); P.v("v_add_u32",aO1,sT0,V(200))
    P.s("s_lshl_b32",sT0,sWV,2); P.s("s_add_u32",sT0,sT0,R2+2048); P.v("v_add_u32",aO2,sT0,V(200))
    for w in range(3): smov64(MK[w],lanemask(lambda l:(l&15)==4*w))
    smov64(MK[3],lanemask(lambda l:(l&3)>=2))
    for w in range(3): smov64(MK[4+w],lanemask(lambda l:(l>>4)==w))
    smov64(MK[7],lanemask(lambda l:(l>>4)==((l&15)>>2)))
    smov64(MK[8],lanemask(lambda l:((l>>2)&1)==0))
    P.s("s_mov_b32",sTHR,f2u(OPT["thr"]) if not OPT["force_slow"] else f2u(0.0))
    P.v("v_mov_b32",x,0x3f800000)
    for i in range(4): P.v("v_cndmask_b32",ONES[i],0,x,MK[3])
    P.v("v_mov_b32",x,0xff800000)
    for w in range(4): P.v("v_cndmask_b32",CM(w)[0],x,0,MK[4+w])
    for T in range(4): P.v("v_mov_b32",KT(T)[3],0)
    for T in range(3):
        P.v("v_mov_b32",QT(T)[3],0)
        for i in range(4): P.v("v_mov_b32",QX(T)[i],0)
        for d in range(2): P.v("v_mov_b32",VV(T,d,1)[3],0)
    P.v("v_mov_b32",V(177),0)
    P.flush(False)
    barrier("B0",0)
    smov64(R("s",106,2) if False else MK[9],lanemask(lambda l:((l>>2)&1)==((l>>1)&1)))
    P.s("s_mov_b64",VCC,MK[9])
    for j in range(3):
        for hh in range(2):
            off=(32*j+8*hh)*576
            P.dsr("ds_read_b64_tr_b16",WQK(0,j)[2*hh:2*hh+2],a0,off)
            P.dsr("ds_read_b64_tr_b16",WQK(2,j)[2*hh:2*hh+2],a0,off+192)
            P.dsr("ds_read_b64_tr_b16",WV(0,j)[2*hh:2*hh+2],a0,off+384)
            P.dsr("ds_read_b64_tr_b16",WQK(1,j)[2*hh:2*hh+2],aZ,off)
            P.dsr("ds_read_b64_tr_b16",V(212+4*j+2*hh,2),aY,off)
            P.dsr("ds_read_b64_tr_b16",WV(1,j)[2*hh:2*hh+2],aV1,off+384)
    for j in range(3):
        for i in range(4):
            P.v("v_cndmask_b32_dpp",WQK(1,j)[i],V(212+4*j+i),WQK(1,j)[i],VCC,mod="quad_perm:[2,3,0,1] row_mask:0xf bank_mask:0xf")
    P.s("s_mov_b64",VCC,MK[8])
    for j in range(3):
        for i in range(4):
            P.v("v_cndmask_b32_dpp",V(224+4*j+i),WV(1,j)[i],WV(1,j)[i],VCC,mod="quad_perm:[2,3,0,1] row_mask:0xf bank_mask:0xf")
            P.v("v_cndmask_b32",WV(1,j)[i],V(224+4*j+i),0,MK[3])
    P.v("v_mov_b32",x,0)
    for d in range(2):
        for j in range(3):
            for i in range(4):
                P.v("v_and_b32",y,0x7fff7fff,WV(d,j)[i]); P.v("v_pk_max_u16",x,x,y)
    P.v("v_lshrrev_b32",y,16,x); P.v("v_and_b32",x,0xffff,x); P.v("v_max_u32",x,x,y)
    P.v("v_cmp_lt_u32",VCC,0x5f00,x)
    P.s("s_cmp_lg_u64",VCC,0); P.s("s_cselect_b32",sTHR,0,sTHR)
    P.flush(False)
    barrier("B1"); barrier("B2")

hb=[0]
def a_qkv_tile(off,kind,w,T):
    b=hb[0]; hb[0]^=1
    for j in range(3): P.dsr("ds_read_b128",HB(b,j),aH,off+1024*j)
    for f in range(3):
        for j in range(3): P.mfma(QKV(b,f),WQK(f,j),HB(b,j),0 if j==0 else QKV(b,f))
    for d in range(2):
        for j in range(3): P.mfma(QKV(b,3+d),HB(b,j),WV(d,j),(0 if d==0 else ONES) if j==0 else QKV(b,3+d))
    q0,q1,q2=QKV(b,0),QKV(b,1),QKV(b,2)
    k=KT(T)
    P.cvt(k[0],q2[0],q2[1]); P.cvt(k[1],q2[2],q2[3]); P.cvt(k[2],q1[2],q1[3])
    if kind=="x":
        def fn():
            for ww in range(3):
                P.s("s_mov_b64",EXEC,MK[ww])
                q=QX(ww)
                P.v("v_cvt_pk_bf16_f32",q[0],q0[0],q0[1],extra_rd=q[0].regs()); P.v("v_cvt_pk_bf16_f32",q[1],q0[2],q0[3],extra_rd=q[1].regs()); P.v("v_cvt_pk_bf16_f32",q[2],q1[0],q1[1],extra_rd=q[2].regs())
            P.s("s_mov_b64",EXEC,-1)
        P.bundle(fn)
        for ww in range(3):
            for d in range(2): P.cvt(VV(ww,d,1)[2],QKV(b,3+d)[0],QKV(b,3+d)[1])
    else:
        q=QT(T)
        P.cvt(q[0],q0[0],q0[1]); P.cvt(q[1],q0[2],q0[3]); P.cvt(q[2],q1[0],q1[1])
        for d in range(2):
            dst=VV(w,d,T>>1); o=2*(T&1)
            P.cvt(dst[o],QKV(b,3+d)[0],QKV(b,3+d)[1]); P.cvt(dst[o+1],QKV(b,3+d)[2],QKV(b,3+d)[3])

first_chk=[True]
def a_norm_store(oa0,oa1,b,off,check=True):
    r=TMP(2*b); r2=TMP(2*b+1); l=oa1[2]
    P.v("v_rcp_f32",r,l)
    if check:
        if first_chk[0]: P.v("v_max_f32",vCHK,l,r); first_chk[0]=False
        else: P.v("v_max3_f32",vCHK,vCHK,l,r)
    P.v("v_mul_f32",r2,f2u(1.0/math.sqrt(c_scale)),r)
    for i in range(4): P.v("v_mul_f32",oa0[i],oa0[i],r2)
    for i in range(2): P.v("v_mul_f32",oa1[i],oa1[i],r2)
    o=OPK(b)
    P.cvt(o[0],oa0[0],oa0[1]); P.cvt(o[1],oa0[2],oa0[3]); P.cvt(o[2],oa1[0],oa1[1])
    P.dsw("ds_write_b64",aO1,o[0:2],off); P.dsw("ds_write_b32",aO2,o[2],off)

def a_softmax(src,dst,b,usemax):
    regs=[(kt,i) for kt in range(3) for i in range(4)]+[(3,0)]
    if usemax:
        m=TMP(4); m2=TMP(5)
        P.v("v_max3_f32",m,src(0)[0],src(0)[1],src(0)[2])
        rest=[src(kt)[i] for kt,i in regs[3:]]
        for a in range(0,10,2): P.v("v_max3_f32",m,m,rest[a],rest[a+1])
        P.v("v_mov_b32",m2,m); P.v("v_permlane16_swap_b32",m,m2); P.v("v_max_f32",m,m,m2)
        P.v("v_mov_b32",m2,m); P.v("v_permlane32_swap_b32",m,m2); P.v("v_max_f32",m,m,m2)
        for kt,i in regs:
            P.v("v_sub_f32",dst(kt)[i],src(kt)[i],m); P.v("v_exp_f32",dst(kt)[i],dst(kt)[i])
    else:
        for kt,i in regs: P.v("v_exp_f32",dst(kt)[i],src(kt)[i])
    for kt in range(3):
        p=PB(b,kt>>1); o=2*(kt&1)
        P.cvt(p[o],dst(kt)[0],dst(kt)[1]); P.cvt(p[o+1],dst(kt)[2],dst(kt)[3])
    P.cvt(PB(b,1)[2],dst(3)[0],0)

def a_attn(w,usemax):
    for q in range(3):
        b=q&1
        for kt in range(4): P.mfma(SA(b,kt),KT(kt),QT(q),0 if kt<3 else CM(w))
        a_softmax(lambda kt:SA(b,kt),lambda kt:SA(b,kt),b,usemax)
        for d in range(2):
            P.mfma(OA(b,d),VV(w,d,0),PB(b,0),0); P.mfma(OA(b,d),VV(w,d,1),PB(b,1),OA(b,d))
        a_norm_store(OA(b,0),OA(b,1),b,OS[w]+3072*q,check=not usemax)
def a_xq(usemax):
    b=1
    a_softmax(SX,lambda kt:SA(b,kt),b,usemax)
    acc=[lambda d:OA(1,d), lambda d:SA(0,d), lambda d:SA(0,2+d)]
    for ww in range(3):
        for d in range(2):
            P.mfma(acc[ww](d),VV(ww,d,0),PB(b,0),0); P.mfma(acc[ww](d),VV(ww,d,1),PB(b,1),acc[ww](d))
    def fn():
        for ww in (1,2):
            P.s("s_mov_b64",EXEC,MK[ww])
            for d,n in ((0,4),(1,3)):
                for i in range(n): P.v("v_mov_b32",acc[0](d)[i],acc[ww](d)[i],extra_rd=acc[0](d)[i].regs())
        P.s("s_mov_b64",EXEC,-1)
    P.bundle(fn)
    a_norm_store(acc[0](0),acc[0](1),b,OX,check=not usemax)

def a_step(w):
    first_chk[0]=True
    if w==0: a_qkv_tile(HX,"x",0,3)
    for T in range(3): a_qkv_tile(HS[w]+3072*T,"n",w,T)
    for kt in range(4):
        P.mfma(SX(kt),KT(kt),QX(w),(0 if kt<3 else CM(3)) if w==0 else SX(kt))
    a_attn(w,False)
    if w==2: a_xq(False)
    P.v("v_cmp_lt_f32",VCC,sTHR,vCHK)
    P.flush(True)
    P.waitl0()
    P.branch("s_cbranch_vccnz",f"L_Aslow{w}")
    P.label(f"L_Aback{w}")
    barrier(f"S{w}")

a_prologue()
if OPT["prioA"]: P.raw(f"s_setprio {OPT['prioA']}")
P.s("s_mov_b32",sG,0); P.flush(False)
P.label("L_Aloop")
for w in range(3): a_step(w)
P.s("s_add_u32",sG,sG,1); P.s("s_cmp_lt_u32",sG,7); P.flush(False); P.branch("s_cbranch_scc1","L_Aloop")
P.raw("s_endpgm"); P.flush(False)
for w in range(3):
    P.label(f"L_Aslow{w}")
    a_attn(w,True)
    if w==2: a_xq(True)
    P.flush(True); P.waitl0()
    P.branch("s_branch",f"L_Aback{w}")

CW=lambda c,k: V(12*c+4*k,4)
vIDX=V(72); vA1=V(73); vA2=V(74); vBP=V(75)
WO=lambda j,e,p: V(76+24*j+12*e+4*p,4)
PERM=lambda e: V(148+4*e,4)
TONES=V(156,4)
ACC=lambda c: V(160+4*c,4)
XBR=lambda j: V(184+4*j,4)
SUM=V(196,4); GRAM=V(200,4)
vK2=V(204); vLW=V(205); vLX=V(206); vLO=V(207); vLXX=V(208)
vDM=[V(209+i) for i in range(5)]; vFL=V(214); vXX=[V(215),V(216)]
vST=[V(217),V(218)]; vXSB=V(219); vXS=V(220)
vRS=V(221); vB=V(222); vT=V(223); vU=V(224); vQ=V(225); vG1=V(226); vTT=V(227)
CH0=[0,1,4,5,8,9]

class Pool:
    def __init__(s,bufs): s.b=bufs; s.i=0
    def get(s):
        r=s.b[s.i%len(s.b)]; s.i+=1; return r

def t_conv(base,rowu,p4,p8,a1,a2):
    off=lambda i,j,c0: base+16*(rowu*i+13*j+c0)
    for c in range(6):
        c0=CH0[c]
        b0=p4.get(); b1=p8.get(); b2=p8.get()
        P.dsr("ds_read_b128",b0,a1,off(1,1,c0))
        P.dsr("ds_read_b128",b1[0:4],a1,off(0,0,c0)); P.dsr("ds_read_b128",b1[4:8],a1,off(1,0,c0))
        P.dsr("ds_read_b128",b2[0:4],a1,off(2,0,c0)); P.dsr("ds_read_b128",b2[4:8],a2,off(0,2,c0))
        P.mfma(ACC(c),CW(c,0),b0,0); P.smfmac(ACC(c),CW(c,1),b1,vIDX); P.smfmac(ACC(c),CW(c,2),b2,vIDX)
        x=XBR(c>>1); o=2*(c&1)
        P.cvt(x[o],ACC(c)[0],ACC(c)[1]); P.cvt(x[o+1],ACC(c)[2],ACC(c)[3])
        if c&1:
            j=c>>1
            P.mfma(SUM,TONES,XBR(j),0 if j==0 else SUM); P.mfma(GRAM,XBR(j),XBR(j),0 if j==0 else GRAM)
    P.v("v_cndmask_b32",vG1,GRAM[0],GRAM[1],MK[1]); P.v("v_cndmask_b32",vG1,vG1,GRAM[2],MK[2]); P.v("v_cndmask_b32",vG1,vG1,GRAM[3],MK[3])
    P.bperm(vQ,vBP,vG1)
    P.v("v_mul_f32",vU,SUM[0],SUM[0])
    P.v("v_fmamk_f32",vT,vQ,f2u(1.0/(96*c_scale)),vK2)
    P.v("v_fmamk_f32",vT,vU,f2u(-1.0/(96*96*c_scale)),vT)
    P.v("v_max_f32",vT,vT,vK2)
    P.v("v_rsq_f32",vRS,vT)
    P.v("v_mul_f32",vB,f2u(-1.0/96),SUM[0])
    P.v("v_mul_f32",vB,vB,vRS)

def t_ln(hpk,addrH,offH,addrX,offX):
    for j in range(3): P.dsw("ds_write_b128",addrX,XBR(j),offX+1024*j)
    for c in range(6):
        for i in range(4): P.v("v_fma_f32",ACC(c)[i],ACC(c)[i],vRS,vB)
        h=hpk(c>>1); o=2*(c&1)
        P.cvt(h[o],ACC(c)[0],ACC(c)[1]); P.cvt(h[o+1],ACC(c)[2],ACC(c)[3])
        if c&1: P.dsw("ds_write_b128",addrH,h,offH+1024*(c>>1))

def t_unit(jw,ob,xb,acc,pk,voff,soff,stoff):
    for e in range(2):
        P.mfma(acc[e],PERM(e),xb,0)
        for p in range(3): P.mfma(acc[e],WO(jw,e,p),ob[p],acc[e])
    for e in range(2):
        P.cvt(pk[2*e],acc[e][0],acc[e][1]); P.cvt(pk[2*e+1],acc[e][2],acc[e][3])
    P.vst("buffer_store_dwordx4",pk,voff,SRDO,soff,stoff)

uid=[0]
def t_dma_main(nd,first,slot):
    win_off(sK,4,sOFF,cls=sCLS)
    P.s("s_cselect_b32",SRDX[2],XBYTES+BIAS,0)
    P.s("s_cmp_eq_u32",sCLS,sCUR)
    P.flush(False)
    uid[0]+=1; lab=f"L_cls{uid[0]}"
    P.branch("s_cbranch_scc1",lab)
    t_setcls(nd)
    P.flush(False)
    P.label(lab)
    t_dma_issue(nd,slot)
def t_setcls(nd):
    P.s("s_mov_b32",sCUR,sCLS)
    for n in range(nd):
        P.s("s_lshl_b32",sT0,sCLS,5*n)
        P.v("v_and_b32",vTT,sT0,vFL); P.v("v_cmp_ne_u32",VCC,0,vTT)
        P.v("v_and_b32",vDM[n],0x7fffffff,vDM[n]); P.v("v_or_b32",vTT,0x80000000,vDM[n])
        P.v("v_cndmask_b32",vDM[n],vDM[n],vTT,VCC)
def t_dma_issue(nd,slot):
    for n in range(nd):
        def fn():
            P.s("s_add_u32",M0,sM0,XSL[slot]+1024*n)
            P.dma(vDM[n],SRDX,sOFF)
        P.bundle(fn)

def tok_tables(T,dy,dx):
    smov64(sTAB,YT[T]); smov64(sTAB2,XT[T])
def tok_extract(dy,dx,sh):
    P.v("v_lshrrev_b64",V(250,2),sh,sTAB); P.v("v_and_b32",dy,7,V(250))
    P.v("v_lshrrev_b64",V(250,2),sh,sTAB2); P.v("v_and_b32",dx,7,V(250))

def t_prologue(is3):
    nd=5 if is3 else 4
    g=V(228); t=V(229); x=V(230); y=V(231); z=V(232); u=V(233); l16=V(234); sh=V(235); pi=V(236); py=V(237); px=V(238); cc=V(239)
    sI=sT5
    P.s("s_sub_u32",sI,sWV,4)
    P.v("v_lshrrev_b32",g,4,vL); P.v("v_and_b32",t,15,vL); P.v("v_lshlrev_b32",l16,4,vL); P.v("v_lshlrev_b32",sh,2,t)
    P.s("s_lshl_b32",sT0,sI,8)
    P.s("s_lshl_b32",sM0,sI,12)
    P.v("v_mov_b32",vFL,0)
    for n in range(nd):
        P.s("s_add_u32",sT1,sT0,64*n)
        P.v("v_add_u32",u,sT1,vL)
        P.v("v_mul_u32_u24",pi,5042,u); P.v("v_lshrrev_b32",pi,16,pi)
        P.v("v_mul_u32_u24",x,13,pi); P.v("v_sub_u32",cc,u,x)
        P.v("v_mul_u32_u24",py,7282,pi); P.v("v_lshrrev_b32",py,16,py)
        P.v("v_mul_u32_u24",x,9,py); P.v("v_sub_u32",px,pi,x)
        P.v("v_mul_u32_u24",x,ROWB,py); P.v("v_mul_u32_u24",y,192,px); P.v("v_lshlrev_b32",z,4,cc)
        P.v("v_add3_u32",vDM[n],x,y,z)
        for bit,(reg,val) in enumerate(((py,0),(py,8),(px,0),(px,8))):
            P.v("v_cmp_eq_u32",VCC,val,reg); P.v("v_mov_b32",x,1<<(5*n+bit)); P.v("v_cndmask_b32",x,0,x,VCC); P.v("v_or_b32",vFL,vFL,x)
        P.v("v_cmp_eq_u32",VCC,12,cc); P.v("v_mov_b32",x,1<<(5*n+4)); P.v("v_cndmask_b32",y,0,x,VCC); P.v("v_or_b32",vFL,vFL,y)
        if is3 and n==4:
            P.v("v_cmp_lt_u32",VCC,80,pi); P.v("v_cndmask_b32",y,0,x,VCC); P.v("v_or_b32",vFL,vFL,y)
    def dma_win(n,slot):
        P.s("s_mov_b32",sK,n-4)
        win_off(sK,4,sOFF,cls=sCLS)
        P.s("s_cselect_b32",SRDX[2],XBYTES+BIAS,0)
        t_setcls(nd); t_dma_issue(nd,slot)
    dma_win(0,0)
    if not is3:
        for n in range(2):
            P.v("v_add_u32",u,64*n,vL)
            P.v("v_mul_u32_u24",pi,5042,u); P.v("v_lshrrev_b32",pi,16,pi)
            P.v("v_mul_u32_u24",x,13,pi); P.v("v_sub_u32",cc,u,x)
            P.v("v_mul_u32_u24",py,21846,pi); P.v("v_lshrrev_b32",py,16,py)
            P.v("v_mul_u32_u24",x,3,py); P.v("v_sub_u32",px,pi,x)
            P.v("v_mul_u32_u24",x,ROWB,py); P.v("v_mul_u32_u24",y,192,px); P.v("v_lshlrev_b32",z,4,cc)
            P.v("v_add3_u32",x,x,y,z); P.v("v_add_u32",x,XTOK[0]*ROWB+XTOK[1]*192,x)
            P.v("v_or_b32",y,0x80000000,x)
            P.v("v_cmp_eq_u32",VCC,12,cc); P.v("v_cndmask_b32",x,x,y,VCC)
            P.v("v_cmp_lt_u32",VCC,8,pi); P.v("v_cndmask_b32",vXX[n],x,y,VCC)
        P.s("s_mov_b32",sK,-4)
        t_dma_xx()
    P.s("s_mov_b32",SRDW[0],S(18)); P.s("s_mov_b32",SRDW[1],S(19)); P.s("s_mov_b32",SRDW[2],1728)
    P.v("v_lshrrev_b32",x,3,t); P.v("v_lshlrev_b32",x,4,x); P.v("v_and_b32",y,7,t); P.v("v_add_u32",x,x,y); P.v("v_lshlrev_b32",x,1,x)
    taps=[[5,5,5,5],[0,1,3,4],[6,7,2,8]]
    P.v("v_lshlrev_b32",z,2,g)
    wa=[V(240),V(241),V(242)]
    for k in range(3):
        P.v("v_lshrrev_b32",y,z,nib(taps[k]) if nib(taps[k])>64 else nib(taps[k])) if False else None
        P.v("v_mov_b32",y,nib(taps[k])); P.v("v_lshrrev_b32",y,z,y); P.v("v_and_b32",y,15,y); P.v("v_mul_u32_u24",y,192,y); P.v("v_add_u32",wa[k],x,y)
    for c in range(6):
        for k in range(3): P.vld("buffer_load_ushort",CW(c,k)[3],wa[k],SRDW,0,16*CH0[c])
    dma_win(1,1); dma_win(2,2)
    P.v("v_and_b32",x,3,t); P.v("v_mul_u32_u24",vIDX,0x5555,x)
    P.v("v_lshrrev_b32",x,2,t); P.v("v_lshl_add_u32",x,x,4,t); P.v("v_lshlrev_b32",vBP,2,x)
    P.v("v_mov_b32",vK2,f2u(1e-5/c_scale))
    for i in range(4): P.v("v_mov_b32",TONES[i],0x3f803f80)
    P.v("v_add_u32",vLO,R2,l16)
    P.v("v_and_b32",x,1,g); P.v("v_lshlrev_b32",x,5,x); P.v("v_lshrrev_b32",y,1,g)
    if is3:
        P.v("v_lshrrev_b32",z,2,t); P.v("v_min_u32",z,2,z); P.v("v_mul_u32_u24",z,132*16,z); P.v("v_add_u32",x,x,z)
        P.v("v_mul_u32_u24",z,13*16,y); P.v("v_add_u32",vA1,x,z); P.v("v_mul_u32_u24",z,13*6*16,y); P.v("v_add_u32",vA2,x,z)
        P.v("v_add_u32",vLW,R1,l16); P.v("v_add_u32",vLXX,R1+XBX0,l16)
        stT=(1,2)
    else:
        for k,(dst,tab) in enumerate(((sTAB,YT),(sTAB2,XT))):
            for h in range(2):
                vals=[(tab[T]>>(32*h))&0xffffffff for T in range(3)]
                P.s("s_mov_b32",dst[h],vals[0]); P.s("s_cmp_eq_u32",sI,1); P.s("s_cselect_b32",dst[h],vals[1],dst[h])
                P.s("s_cmp_eq_u32",sI,2); P.s("s_cselect_b32",dst[h],vals[2],dst[h])
        tok_extract(py,px,sh)
        P.v("v_mul_u32_u24",z,9,py); P.v("v_add_u32",z,z,px); P.v("v_mul_u32_u24",z,13*16,z); P.v("v_add_u32",x,x,z)
        P.v("v_mul_u32_u24",z,13*16,y); P.v("v_add_u32",vA1,x,z); P.v("v_mul_u32_u24",z,13*18*16,y); P.v("v_add_u32",vA2,x,z)
        P.s("s_mul_i32",sT0,sI,3072); P.s("s_add_u32",sT0,sT0,R1); P.v("v_add_u32",vLW,sT0,l16)
        P.s("s_mul_i32",sT0,sI,1024); P.s("s_add_u32",sT0,sT0,R1); P.v("v_add_u32",vLX,sT0,l16)
        P.v("v_add_u32",vLXX,XBX1,vLX)
        stT=(0,1)
    P.v("v_lshlrev_b32",u,4,g)
    if not is3:
        P.s("s_lshl_b32",sT0,sI,6); P.v("v_add_u32",u,sT0,u)
    for k,T in enumerate(stT):
        smov64(sTAB,YT[T]); smov64(sTAB2,XT[T]); tok_extract(py,px,sh)
        P.v("v_mul_u32_u24",x,ROWB,py); P.v("v_mul_u32_u24",y,192,px); P.v("v_add3_u32",vST[k],x,y,u)
    for r in range(4): smov64(MK[r],lanemask(lambda l:(l&3)==r))
    for k in range(4): smov64(MK[4+k],lanemask(lambda l:((l&15)>>2)==k))
    if not is3:
        P.v("v_add_u32",x,XTOK[0]*ROWB+XTOK[1]*192,u); P.v("v_or_b32",y,0x40000000,x)
        smov64(sTAB,lanemask(lambda l:(l&15) in (0,4,8)))
        P.v("v_cndmask_b32",vXSB,y,x,sTAB)
    P.s("s_mov_b32",sDX,(XBX1-XBX0) if is3 else -(XBX1-XBX0))
    P.v("v_and_b32",x,1,t); P.v("v_lshlrev_b32",x,4,x); P.v("v_mov_b32",y,0x3f80); P.v("v_lshlrev_b32",y,x,y)
    for e in range(2):
        for k in range(4):
            smov64(sTAB,lanemask(lambda l:((l>>4)&1)==e and (l>>5)==((l&15)>>3) and ((l&7)>>1)==k))
            P.v("v_cndmask_b32",PERM(e)[k],0,y,sTAB)
    P.flush(False)
    P.waitv(2*nd)
    smov64(sTAB2,lanemask(lambda l:l<32))
    for c in range(6):
        w=CW(c,0)[3]
        P.v("v_mov_b32",z,0x3f80); P.v("v_cndmask_b32",z,w,z,sTAB2); P.v("v_lshlrev_b32",z,x,z)
        for k in range(4):
            smov64(sTAB,lanemask(lambda l:((l>>4)&1)==((l&15)>>3) and ((l&7)>>1)==k))
            P.v("v_cndmask_b32",CW(c,0)[k],0,z,sTAB)
        for kk in (1,2):
            for k in range(4): P.v("v_cndmask_b32",CW(c,kk)[k],0,CW(c,kk)[3],MK[4+k])
    r=V(240); c_=V(241); a1=V(242); a2=V(243)
    P.v("v_lshrrev_b32",r,2,t); P.v("v_and_b32",c_,3,t); P.v("v_lshlrev_b32",c_,4,c_)
    if is3: P.v("v_add_u32",c_,WOSTG,c_)
    else:
        P.s("s_lshl_b32",sT0,sI,6); P.s("s_add_u32",sT0,sT0,WOSTG); P.v("v_add_u32",c_,sT0,c_)
    P.v("v_lshl_add_u32",x,g,2,r); P.v("v_mul_u32_u24",x,192,x); P.v("v_add_u32",a1,x,c_)
    P.v("v_lshrrev_b32",x,1,r); P.v("v_mul_u32_u24",x,24,x); P.v("v_and_b32",y,1,r); P.v("v_lshl_add_u32",y,g,1,y); P.v("v_add3_u32",x,x,y,16)
    P.v("v_mul_u32_u24",x,192,x); P.v("v_add_u32",a2,x,c_)
    P.flush(False)
    barrier("B0")
    for j in range(3 if is3 else 1):
        for e in range(2):
            for p in range(3):
                for hh in range(2):
                    if p<2: P.dsr("ds_read_b64_tr_b16",WO(j,e,p)[2*hh:2*hh+2],a1,24*(2*p+hh)*192+8*e+64*j)
                    else: P.dsr("ds_read_b64_tr_b16",WO(j,e,p)[2*hh:2*hh+2],a2,48*hh*192+8*e+64*j)
    P.flush(False); P.waitl0()

def t_dma_xx():
    P.s("s_sub_u32",sT4,sWV,4); P.s("s_add_i32",sT4,sT4,sK)
    win_off(sT4,4,sOFFX)
    P.s("s_cselect_b32",SRDX[2],XBYTES+BIAS,0)
    P.s("s_sub_u32",sT4,sWV,4); P.s("s_mul_i32",sT4,sT4,132*16)
    for n in range(2):
        def fn():
            P.s("s_add_u32",M0,sT4,XX+1024*n)
            P.dma(vXX[n],SRDX,sOFFX)
        P.bundle(fn)

def t_store_setup():
    win_off(sK,-1,sOFFS)
    P.s("s_cselect_b32",SRDO[2],XBYTES,0)

def ti_pools():
    p4=Pool([V(100,4),V(104,4)]); p8=Pool([V(108+8*i,8) for i in range(4)])
    return p4,p8
TI_HPK=lambda j: V(228+4*j,4)
def ti_units(s):
    slot=(s+2)%3
    units=[]
    if s==0: units.append("x")
    units.append(0)
    if s==1: units.append(1)
    nst=0
    for k,T in enumerate(units):
        ob=[V(240+4*p,4) for p in range(3)] if k==0 else [TI_HPK(p) for p in range(3)]
        xb=V(252,4) if k==0 else V(140,4)
        acc=[V(140,4),V(144,4)] if k==0 else [V(240,4),V(244,4)]
        pk=V(252,4) if k==0 else V(248,4)
        if k==1: xb=V(144,4)
        if T=="x":
            for p in range(3): P.dsr("ds_read_b128",ob[p],vLO,OX+1024*p)
            P.dsr("ds_read_b128",xb,vLXX,0)
            P.v("v_add_u32",vLXX,sDX,vLXX); P.s("s_sub_i32",sDX,0,sDX)
            for ww in range(3): win_off(sK,ww-3,sXO[ww],inval=0x40000000)
            P.v("v_mov_b32",vXS,sXO[0]); P.v("v_mov_b32",vTT,sXO[1]); P.v("v_cndmask_b32",vXS,vXS,vTT,MK[5])
            P.v("v_mov_b32",vTT,sXO[2]); P.v("v_cndmask_b32",vXS,vXS,vTT,MK[6]); P.v("v_add_u32",vXS,vXS,vXSB)
            P.s("s_mov_b32",SRDO[2],XBYTES)
            t_unit(0,ob,xb,acc,pk,vXS,0,0)
            t_store_setup()
        else:
            if k==0: t_store_setup()
            for p in range(3): P.dsr("ds_read_b128",ob[p],vLO,OS[slot]+3072*T+1024*p)
            P.dsr("ds_read_b128",xb,vLX,XBS[slot]+3072*T)
            t_unit(0,ob,xb,acc,pk,vST[T],sOFFS,0)
        nst+=1
    return nst
TI_ND=[4,4,6]; TI_NS=[2,2,1]
def ti_step(s):
    t_dma_main(4,False,(s+1)%3)
    if s==2: t_dma_xx()
    t_ln(TI_HPK,vLW,HS[(s+1)%3],vLW,XBS[(s+1)%3])
    p4,p8=ti_pools()
    t_conv(XSL[(s+2)%3],117,p4,p8,vA1,vA2)
    ti_units(s)
    P.s("s_add_i32",sK,sK,1)
    P.flush(True)
    barrier("B2" if False else f"S{s}",TI_NS[(s+2)%3]+TI_ND[s]+TI_NS[s])

def t3_tile(T,slot,k,regs):
    ob,xbs,accs,pks=regs
    for p in range(3): P.dsr("ds_read_b128",ob[p],vLO,OS[slot]+3072*T+1024*p)
    for j in range(3):
        P.dsr("ds_read_b128",xbs[j],vLW,XBS[slot]+3072*T+1024*j)
    for j in range(3):
        t_unit(j,ob,xbs[j],accs[j&1],pks[j&1],vST[T-1],sOFFS,64*j)
T3A=([V(160+4*p,4) for p in range(3)],[V(172+4*j,4) for j in range(3)],[[V(184,4),V(188,4)],[V(192,4),V(196,4)]],[V(200,4),V(252,4)])
T3B=([V(228+4*p,4) for p in range(3)],[V(240+4*j,4) for j in range(3)],[[V(184,4),V(188,4)],[V(192,4),V(196,4)]],[V(200,4),V(252,4)])
def t3_convx():
    p4=Pool([V(252,4)]); p8=Pool([V(228+8*i,8) for i in range(3)])
    t_conv(XX,39,p4,p8,vA1,vA2)
    t_ln(lambda j:V(228+4*j,4),vLW,HX,vLXX,0)
    P.v("v_add_u32",vLXX,sDX,vLXX); P.s("s_sub_i32",sDX,0,sDX)
T3_NS=[6,3,6]
def t3_step(s):
    t_dma_main(5,False,(s+1)%3)
    slot=(s+2)%3
    t_store_setup()
    if s!=1:
        t3_tile(1,slot,0,T3A); t3_tile(2,slot,1,T3B)
    else:
        t3_tile(2,slot,0,T3A); t3_convx()
    P.s("s_add_i32",sK,sK,1)
    P.flush(True)
    barrier(f"S{s}",T3_NS[(s+2)%3]+5+T3_NS[s])

P.label("L_T")
P.s("s_cmp_eq_u32",sWV,7); P.flush(False); P.branch("s_cbranch_scc1","L_T3")
for is3 in (False,True):
    nm="T3" if is3 else "Ti"
    if is3: P.label("L_T3")
    t_prologue(is3)
    if is3: t3_convx()
    else:
        p4,p8=ti_pools(); t_conv(XSL[0],117,p4,p8,vA1,vA2)
    P.s("s_mov_b32",sK,-1); P.s("s_mov_b32",sG,0)
    if OPT["prioT"]: P.raw(f"s_setprio {OPT['prioT']}")
    P.flush(True)
    barrier("B1",0)
    P.branch("s_branch",f"L_{nm}2")
    P.label(f"L_{nm}loop")
    step=t3_step if is3 else ti_step
    step(0); step(1)
    P.label(f"L_{nm}2")
    if OPT["dump"]=="B2": OPT["dump"]="S2"; step(2); OPT["dump"]="B2"
    elif OPT["dump"]=="S2":
        OPT["dump"]=None; step(2); OPT["dump"]="S2"
        P.s("s_cmp_eq_u32",sG,1); P.flush(False); P.branch("s_cbranch_scc1","L_dump")
    else: step(2)
    P.s("s_add_u32",sG,sG,1); P.s("s_cmp_lt_u32",sG,8); P.flush(False); P.branch("s_cbranch_scc1",f"L_{nm}loop")
    if is3:
        t_store_setup(); t3_tile(1,2,0,T3A); t3_tile(2,2,1,T3B)
    else: ti_units(0)
    P.flush(True)
    P.raw("s_endpgm"); P.flush(False)

if OPT["dump"]:
    P.label("L_dump")
    P.raw("s_waitcnt vmcnt(0)"); P.raw("s_barrier")
    P.v("v_mbcnt_lo_u32_b32",V(0),-1,0); P.v("v_mbcnt_hi_u32_b32",V(0),-1,V(0)); P.v("v_lshlrev_b32",V(0),4,V(0))
    P.s("s_mul_i32",sT0,sWV,20480); P.v("v_add_u32",V(0),sT0,V(0))
    P.s("s_mov_b32",SRDW[0],S(28)); P.s("s_mov_b32",SRDW[1],S(29)); P.s("s_mov_b32",SRDW[2],1<<28)
    P.s("s_mul_i32",sT1,sQ,163840)
    for n in range(20):
        P.dsr("ds_read_b128",V(4,4),V(0),1024*n)
        P.s("s_add_u32",sT2,sT1,1024*n)
        P.vst("buffer_store_dwordx4",V(4,4),V(0),SRDW,sT2,0)
        P.raw("s_waitcnt vmcnt(0)")
    P.flush(False)
P.label("L_end")
P.raw("s_endpgm"); P.flush(False)

body=P.text()
hdr=open("standalone__window_attn_davit__vision.s.ref").read().split("\n")
lines=[l for l in hdr if l.startswith(";") and "@launch" not in l and not l.startswith("; Override") and not l.startswith("; grid=ceil")]
lds=163840 if OPT["dump"] else LDS_TOTAL
txt="\n".join(lines)+f"\n; @launch grid=(256,1,1) block=(512,1,1) lds={lds}\n"
txt+=f""".amdgcn_target "amdgcn-amd-amdhsa--gfx950"
.text
.globl {KN}
.p2align 8
.type {KN},@function
{body}.section .rodata,"a"
.p2align 6
.amdhsa_kernel {KN}
  .amdhsa_next_free_vgpr 256
  .amdhsa_next_free_sgpr 96
  .amdhsa_accum_offset 256
  .amdhsa_group_segment_fixed_size 0
  .amdhsa_kernarg_size 56
  .amdhsa_user_sgpr_count 2
  .amdhsa_user_sgpr_kernarg_segment_ptr 1
  .amdhsa_system_sgpr_workgroup_id_x 1
.end_amdhsa_kernel
"""
open(OUT,"w").write(txt)
import collections
cnt=collections.Counter(i.kind for i in P.final)
print("instr kinds:",dict(cnt))
for i in P.final:
    if i.tag=="comment": print(i.text)
```

```python
import re

class R:
    __slots__=("k","i","n")
    def __init__(s,k,i,n=1): s.k=k; s.i=i; s.n=n
    def __str__(s):
        return f"{s.k}{s.i}" if s.n==1 else f"{s.k}[{s.i}:{s.i+s.n-1}]"
    def regs(s): return {f"{s.k}{s.i+j}" for j in range(s.n)}
    def __getitem__(s,j):
        if isinstance(j,slice):
            a=j.start or 0; b=j.stop if j.stop is not None else s.n
            assert 0<=a<b<=s.n
            return R(s.k,s.i+a,b-a)
        assert 0<=j<s.n
        return R(s.k,s.i+j,1)
def V(i,n=1):
    assert 0<=i and i+n<=256, (i,n)
    if n>1: assert i%2==0, ("unaligned tuple",i,n)
    return R("v",i,n)
def S(i,n=1): return R("s",i,n)
class Sp:
    def __init__(s,name): s.name=name
    def __str__(s): return s.name
    def regs(s): return {s.name}
VCC=Sp("vcc"); EXEC=Sp("exec"); M0=Sp("m0")
class Neg:
    def __init__(s,r): s.r=r
    def __str__(s): return "-"+str(s.r)
    def regs(s): return s.r.regs()

def regs_of(x):
    return x.regs() if hasattr(x,"regs") else set()
def fmt(x):
    if isinstance(x,int):
        if -16<=x<=64: return str(x)
        return hex(x & 0xffffffff)
    return str(x)

class Ins:
    __slots__=("text","kind","rd","wr","srcc","cost","states","prio","idx","sub","tag","dtuple")
    def __init__(s,text,kind,rd=(),wr=(),srcc=(),cost=4,states=1,sub=None,tag=None):
        s.text=text; s.kind=kind; s.rd=set(rd); s.wr=set(wr); s.srcc=set(srcc)
        s.cost=cost; s.states=states; s.sub=sub; s.tag=tag; s.prio=0

VALU_KINDS=("valu","trans","dpp","perm","rdlane")
MF=("mfma","smfmac")
TRANS_OPS=("v_exp_f32","v_rcp_f32","v_rsq_f32","v_log_f32","v_sqrt_f32","v_rcp_iflag_f32")

class Prog:
    def __init__(s):
        s.cur=[]
        s.out=[]
        s.LDS_LAT=128
        s.order_prio=True
        s.max_lds=12
        s.excl=False
        s.excl_look=0
        s.slack=0
        s.pref_trans=True
        s.wait_merge=20
    def add(s,i): s.cur.append(i); return i
    def v(s,op,dst,*src,mod="",extra_rd=(),extra_wr=()):
        kind="trans" if op in TRANS_OPS else "valu"
        cost=8 if kind=="trans" else 4
        rd=set().union(*[regs_of(x) for x in src]) if src else set()
        wr=set(regs_of(dst))
        if op in("v_fmac_f32",): rd|=wr
        if "dpp" in op: kind="dpp"
        if op.startswith("v_permlane"):
            kind="perm"; cost=8; rd|=wr; wr|=rd
        if op in("v_readfirstlane_b32","v_readlane_b32"): kind="rdlane"
        rd|=set(extra_rd); wr|=set(extra_wr)
        t=f"{op} {fmt(dst)}"+"".join(", "+fmt(x) for x in src)+((" "+mod) if mod else "")
        return s.add(Ins(t,kind,rd,wr,cost=cost))
    def s(s,op,dst,*src,scc_w=None,scc_r=None):
        rd=set().union(*[regs_of(x) for x in src]) if src else set()
        wr=set(regs_of(dst))
        if op.startswith("s_cmp"):
            rd|=wr; wr={"scc"}
        else:
            if scc_w is None: scc_w = not (op.startswith("s_mov") or op.startswith("s_cselect") or op.startswith("s_mul") or op.startswith("s_movk"))
            if scc_w: wr.add("scc")
        if op.startswith("s_cselect") or op in("s_addc_u32","s_subb_u32"): rd.add("scc")
        t=f"{op} {fmt(dst)}"+"".join(", "+fmt(x) for x in src)
        return s.add(Ins(t,"salu",rd,wr))
    def mfma(s,d,a,b,c):
        rd=regs_of(a)|regs_of(b)|regs_of(c)
        i=Ins(f"v_mfma_f32_16x16x32_bf16 {d}, {a}, {b}, {fmt(c)}","mfma",rd,regs_of(d),srcc=regs_of(c),cost=8)
        return s.add(i)
    def smfmac(s,d,a,b,idx):
        rd=regs_of(a)|regs_of(b)|regs_of(d)|regs_of(idx)
        i=Ins(f"v_smfmac_f32_16x16x64_bf16 {d}, {a}, {b}, {idx}","smfmac",rd,regs_of(d),srcc=regs_of(d),cost=12)
        return s.add(i)
    def cvt(s,d,x,y): return s.v("v_cvt_pk_bf16_f32",d,x,y)
    def dsr(s,op,d,addr,off=0,mem=()):
        assert 0<=off<65536,off
        return s.add(Ins(f"{op} {d}, {addr}"+(f" offset:{off}" if off else ""),"dsr",regs_of(addr)|set(mem),regs_of(d),cost=4))
    def dsw(s,op,addr,src,off=0,mem=()):
        assert 0<=off<65536,off
        return s.add(Ins(f"{op} {addr}, {src}"+(f" offset:{off}" if off else ""),"dsw",regs_of(addr)|regs_of(src),set(mem),cost=4))
    def bperm(s,d,addr,src):
        return s.add(Ins(f"ds_bpermute_b32 {d}, {addr}, {src}","dsr",regs_of(addr)|regs_of(src),regs_of(d),cost=4))
    def dma(s,voff,srd,soff,off=0,mod=""):
        return s.add(Ins(f"buffer_load_dwordx4 {voff}, {srd}, {fmt(soff)} offen"+(f" offset:{off}" if off else "")+((" "+mod) if mod else "")+" lds","dma",
                         regs_of(voff)|regs_of(srd)|regs_of(soff)|{"m0","VM"},{"VM"},cost=4))
    def vst(s,op,data,voff,srd,soff,off=0,mod=""):
        return s.add(Ins(f"{op} {data}, {voff}, {srd}, {fmt(soff)} offen"+(f" offset:{off}" if off else "")+((" "+mod) if mod else ""),"vst",
                         regs_of(data)|regs_of(voff)|regs_of(srd)|regs_of(soff)|{"VM"},{"VM"},cost=4,tag=data))
    def vld(s,op,d,voff,srd,soff,off=0):
        return s.add(Ins(f"{op} {d}, {voff}, {srd}, {fmt(soff)} offen"+(f" offset:{off}" if off else ""),"vld",
                         regs_of(voff)|regs_of(srd)|regs_of(soff)|{"VM"},regs_of(d)|{"VM"},cost=4))
    def raw(s,text,kind="other",rd=(),wr=(),states=1):
        return s.add(Ins(text,kind,rd,wr,states=states))
    def bundle(s,fn):
        save=s.cur; s.cur=[]
        fn()
        sub=s.cur; s.cur=save
        rd=set(); wr=set()
        for i in sub:
            rd|=(i.rd-wr); wr|=i.wr
        rd.discard("exec"); wr.discard("exec")
        b=Ins("<bundle>","bundle",rd,wr,cost=sum(i.cost for i in sub),sub=sub)
        return s.add(b)
    def flush(s,sched=True,mf_gap=16,window=None):
        ins=s.cur; s.cur=[]
        if sched and len(ins)>1: ins=s.schedule(ins,mf_gap,window)
        for i in ins:
            if i.kind=="bundle": s.out.extend(i.sub)
            else: s.out.append(i)
    def label(s,name):
        assert not s.cur
        s.out.append(Ins(name+":","label",states=0))
    def branch(s,op,target):
        assert not s.cur
        rd={"scc"} if "scc" in op else ({"vcc"} if "vcc" in op else set())
        s.out.append(Ins(f"{op} {target}","branch",rd))
    def barrier(s,vm=None):
        assert not s.cur
        s.out.append(Ins("s_waitcnt lgkmcnt(0)"+(f" vmcnt({vm})" if vm is not None else ""),"wait0"))
        s.out.append(Ins("s_barrier","other"))
    def waitv(s,n):
        assert not s.cur
        s.out.append(Ins(f"s_waitcnt vmcnt({n})","other"))
    def waitl0(s):
        assert not s.cur
        s.out.append(Ins(f"s_waitcnt lgkmcnt(0)","wait0"))
    def comment(s,t):
        assert not s.cur
        s.out.append(Ins("; "+t,"label",states=0,tag="comment"))

    def lat(s,p,c,reg,typ):
        pk=p.kind
        if reg.isupper(): return p.cost
        if typ=="raw":
            if pk=="dsr": return s.LDS_LAT
            if pk in MF:
                if c.kind in MF and reg in c.srcc and c.srcc=={r for r in p.wr if r[0]=="v"}: return 16
                if c.kind in MF and reg in c.srcc: return 28
                return 36
            if pk in VALU_KINDS or pk=="bundle":
                if c.kind in MF: return p.cost+8
                if c.kind in("dpp","perm"): return p.cost+8
                if pk=="trans": return p.cost+4
                if reg[0]=="s" or reg=="vcc": return p.cost+20
                return p.cost
            return p.cost
        if typ=="war":
            if pk in MF and reg in p.srcc and c.kind not in MF: return 16
            if pk=="vst": return 12
            return p.cost
        if typ=="waw":
            if pk in MF and c.kind not in MF: return 36
            if pk=="dsr": return s.LDS_LAT
            return p.cost
    def schedule(s,ins,mf_gap,window):
        n=len(ins)
        preds=[dict() for _ in range(n)]
        lastw={}; readers={}
        for k,i in enumerate(ins):
            for r in i.rd:
                if r in lastw:
                    j=lastw[r]; preds[k][j]=max(preds[k].get(j,0),s.lat(ins[j],i,r,"raw"))
            for r in i.wr:
                if r in lastw:
                    j=lastw[r]; preds[k][j]=max(preds[k].get(j,0),s.lat(ins[j],i,r,"waw"))
                for j in readers.get(r,()):
                    if j!=k: preds[k][j]=max(preds[k].get(j,0),s.lat(ins[j],i,r,"war"))
            for r in i.rd: readers.setdefault(r,[]).append(k)
            for r in i.wr: lastw[r]=k; readers[r]=[]
        succs=[[] for _ in range(n)]
        for k in range(n):
            for j,l in preds[k].items(): succs[j].append((k,l))
        cp=[0]*n
        for k in range(n-1,-1,-1):
            cp[k]=ins[k].cost+max([l+cp[c] for c,l in succs[k]],default=0)
        npred=[len(p) for p in preds]
        ready_t=[0]*n
        cand=[k for k in range(n) if npred[k]==0]
        order=[]; lds_out=[]
        tV=0; tD=0; tS=0; tm=0; nmf=0
        def cls(i):
            k=i.kind
            if k in MF: return "M"
            if k in VALU_KINDS: return "V"
            if k in("dsr","dsw","dma","vst","vld"): return "D"
            if k=="bundle": return "B"
            return "S"
        def after(i,t):
            c=cls(i)
            if c=="M": return (t+i.cost,t+4,t+4)
            if c=="V": return (t+i.cost,t+i.cost+4,t+i.cost)
            if c=="B": return (t+i.cost,t+i.cost+4,t+i.cost)
            if i.kind=="dsr": return (max(tV,t+8),t+4,t+8)
            if i.kind=="dsw":
                w=24 if "b128" in i.text else (16 if "b64" in i.text else 12)
                return (max(tV,t+w),t+w,t+w)
            if c=="D": return (max(tV,t+16),t+16,t+16)
            return (max(tV,t+4),max(tD,t+4),t+4)
        def it(k):
            i=ins[k]; c=cls(i); r=ready_t[k]
            if c=="M": return max(r,tV,tm)
            if c=="V": return max(r,tV)
            if c=="B": return max(r,tV if i.sub[0].kind!="salu" else tS)
            if c=="D":
                r=max(r,tD)
                if i.kind in("dsr","dsw"):
                    lo=[x for x in lds_out if x>r]
                    if len(lo)>=s.max_lds: r=max(r,sorted(lo)[len(lo)-s.max_lds])
                return r
            return max(r,tS)
        while cand:
            now=min(tV,tD,tS)
            ms=[k for k in cand if ins[k].kind in MF]
            os_=[k for k in cand if ins[k].kind not in MF]
            pick=None
            mk=None
            if ms:
                tbest=min(it(k) for k in ms)
                mk=min([k for k in ms if it(k)<=tbest],key=lambda k:k-ins[k].prio)
                tM=it(mk)
            if s.excl:
                vs=[k for k in os_ if cls(ins[k])=="V"]
                ns_=[k for k in os_ if cls(ins[k])!="V"]
                shadow=[k for k in vs if it(k)+ins[k].cost<=tm and it(k)<=tV]
                free_=[k for k in ns_ if cls(ins[k]) in("S","D") and after(ins[k],it(k))[0]<=tV and it(k)<=max(tS,tD)]
                nowr=[k for k in ns_ if it(k)<=max(tV,tD,tS,tm)+s.excl_look]
                if free_: pick=min(free_,key=lambda k:(0 if ins[k].kind=="dsr" else 1,k))
                elif shadow: pick=min(shadow,key=lambda k:k-ins[k].prio)
                elif nowr: pick=min(nowr,key=lambda k:(0 if ins[k].kind in("dsr","dsw") else 1,k))
                elif mk is not None: pick=mk
                elif ns_ and (not vs or min(it(k) for k in ns_)<=min(it(k) for k in vs)): pick=min(ns_,key=lambda k:(it(k),k))
                else: pick=min(vs,key=lambda k:(max(it(k),tV),k-ins[k].prio))
            elif os_:
                if mk is not None and tM<=max(tm,tV)+s.slack:
                    fit=[k for k in os_ if after(ins[k],it(k))[0]<=tM]
                    if fit:
                        def key(k):
                            i=ins[k]; c=cls(i); t0=it(k)
                            late = 0 if t0<=(tS if c in("S","D","B") else tV) else 1
                            rank = 0 if i.kind in("dsr",) else (1 if c in("S","D") else 2)
                            rem=tM-max(tV,t0)
                            tr = 0 if (c=="V" and i.cost==8 and rem%8==0 and s.pref_trans) else 1
                            return (late,rank,k-i.prio)
                        pick=min(fit,key=key)
                    else: pick=mk
                else:
                    tb=min(it(k) for k in os_)
                    if mk is not None and tM<=tb: pick=mk
                    else:
                        lim=max(tb,tV)
                        rdy=[k for k in os_ if it(k)<=lim]
                        pick=min(rdy,key=lambda k:(0 if ins[k].kind=="dsr" else 1,k-ins[k].prio))
            else: pick=mk
            k=pick; i=ins[k]; t=it(k)
            order.append(i); cand.remove(k)
            tV,tD,tS=after(i,t)
            if i.kind in MF:
                if isinstance(mf_gap,(list,tuple)): tm=t+mf_gap[nmf%len(mf_gap)]
                else: tm=t+mf_gap
                nmf+=1
            if i.kind in("dsr","dsw"): lds_out.append(t+s.LDS_LAT)
            for c,l in succs[k]:
                ready_t[c]=max(ready_t[c],t+l); npred[c]-=1
                if npred[c]==0: cand.append(c)
        assert len(order)==n
        s.last_len=max(tV,tD,tS)
        return order

    def need_states(s,p,c):
        need=0
        pk=p.kind; ck=c.kind
        cv = ck in VALU_KINDS
        if pk in VALU_KINDS:
            vw={r for r in p.wr if r[0]=="v" and r!="vcc"}
            sw={r for r in p.wr if r[0]=="s" or r=="vcc"}-{"scc"}
            if vw&c.rd:
                if ck in MF: need=max(need,2)
                if ck in("dpp","perm"): need=max(need,2)
                if ck=="rdlane": need=max(need,1)
                if pk=="trans" and cv and ck!="trans": need=max(need,1)
                if pk=="trans" and not cv: need=max(need,1)
            if sw&c.rd:
                if cv: need=max(need,4 if ck=="rdlane" else 2)
                if ck in("dma","vst","vld"): need=max(need,5)
                if ck in("salu","branch"): need=max(need,5 if ck=="branch" else 2)
        if pk in MF:
            if ck in MF:
                if p.wr&c.srcc:
                    if c.srcc!={r for r in p.wr if r[0]=="v"}: need=max(need,6)
                if p.wr&(c.rd-c.srcc): need=max(need,8)
                if ck=="mfma" and False: pass
            else:
                if p.wr&(c.rd|c.wr): need=max(need,8)
                if cv and (p.srcc&c.wr): need=max(need,3)
        if pk=="salu" and "m0" in p.wr and ck=="dma": need=max(need,1)
        if pk=="vst" and p.tag is not None and p.tag.n>=3 and (p.tag.regs()&c.wr): need=max(need,2)
        return need
    def finalize(s):
        assert not s.cur
        res=[]
        hist=[]
        pend=[]
        def emit(i):
            res.append(i)
        def elapsed(seq,c):
            t=0; vfree=0; mlast=None
            for x in seq+[c]:
                isv = x is not None and (x.kind in VALU_KINDS or x.kind in MF)
                if isv: t=max(t,vfree)
                if x is not None and x.kind in MF and mlast is not None: t=max(t,mlast+16)
                if x is c: return t
                if isv: vfree=t+x.cost
                if x.kind in MF: mlast=t
                t+=4*x.states
        def dist_pad(c,allc=False):
            d=0; pad=0
            for idx in range(len(res)-1,-1,-1):
                p=res[idx]
                if p.kind=="label" and p.tag!="comment": break
                if d>=8: break
                if allc:
                    nd = 8 if p.kind in MF else (5 if p.kind in VALU_KINDS and any(r[0]=="s" or r=="vcc" for r in p.wr) else (2 if p.kind in VALU_KINDS or p.kind=="vst" else (1 if p.kind=="salu" and "m0" in p.wr else 0)))
                else:
                    nd=s.need_states(p,c)
                if nd>d:
                    k=nd-d
                    if p.kind in MF:
                        seq=res[idx:]
                        k=0
                        while elapsed(seq+([Ins("","nop",states=k)] if k else []),c)<4*(nd+1): k+=1
                    pad=max(pad,k)
                d+=p.states
            return pad
        for i in s.out:
            if i.kind=="label":
                if i.tag!="comment":
                    pad=dist_pad(None,True)
                    if pad: emit(Ins(f"s_nop {pad-1}","nop",states=pad))
                    assert not any(d[0] for d in pend), ("lds reads outstanding at label",i.text)
                emit(i); continue
            if i.kind=="wait0":
                pend=[]; emit(i); continue
            touch=i.rd|i.wr
            last=-1
            for k,d in enumerate(pend):
                if d[0]&touch: last=k
            if last>=0:
                while last+1<len(pend) and len(res)-pend[last+1][1]>=s.wait_merge: last+=1
                nleft=len(pend)-1-last
                w=Ins(f"s_waitcnt lgkmcnt({nleft})","other")
                pos=len(res); j=len(res)-1; steps=0
                while j>=0 and steps<3 and res[j].kind in VALU_KINDS: j-=1; steps+=1
                if j>=0 and res[j].kind in MF and steps>0 and (j+1-pend[last][1])>=s.wait_merge//2: pos=j+1
                res.insert(pos,w)
                pend=pend[last+1:]
            if i.kind in("dsr","dsw") and len(pend)>=15:
                emit(Ins(f"s_waitcnt lgkmcnt(13)","other")); pend=pend[len(pend)-13:]
            if i.kind=="branch":
                pad=max(dist_pad(i), dist_pad(None,True)-1)
                assert not any(d[0] for d in pend), ("lds reads outstanding at branch",i.text)
            else:
                pad=dist_pad(i)
            if pad>0: emit(Ins(f"s_nop {pad-1}","nop",states=pad))
            emit(i)
            if i.kind=="dsr": pend.append(({r for r in i.wr if r[0]=="v"},len(res)))
            if i.kind=="dsw": pend.append((set(),len(res)))
        return res
    def text(s):
        res=s.finalize()
        lines=[]
        for i in res:
            lines.append(i.text if (i.kind=="label" or i.tag=="soft") else "    "+i.text)
        s.final=res
        return "\n".join(lines)+"\n"
```

```python
import sys, math, struct
from asmlib import *

OPT=dict(sleep=2, sleep2=1, fast0=0, trprio=0, pref=0, map="lin", ldmod="nt", stmod="sc0 sc1", dmafirst=0, aprio=2, dump=None, prioA=0, prioT=1, force_slow=False, lat=96, thr=2.0**40, gapA=16, gapT=16, stamps=0)
for a in sys.argv[1:]:
    if "=" in a:
        k,v=a.split("=",1); OPT[k]=eval(v)
OUT=OPT.get("out","standalone__window_attn_davit__vision.s")
KN="standalone__window_attn_davit__vision_kernel"

def f2u(f): return struct.unpack("<I",struct.pack("<f",f))[0]
ROWB=511*192; BIAS=ROWB+192; XBYTES=50135232
NWIN=21; NWG=254 if OPT.get("map","band")=="band" else 256; INV=0x40000000
c_scale=(24**-0.5)*math.log2(math.e)
XS=17408; XSL=[0,XS,2*XS]; XX=3*XS; FLAG=XX+6272
R1=58560
HX=0; XBX0=3072; HS=[6144,24576,33792]; XBS=[15360,43008,52224]; XBX1=61440
R2=R1+64512
OS=[0,9216,18432]; OX=27648
WSTG=R1+33792; WOSTG=R2+18432; LDS_TOTAL=WOSTG+18432
assert WSTG+55296<=LDS_TOTAL
assert LDS_TOTAL<=163840 and WOSTG%16==0

XTOK=(2,4)
byres={}
for y in range(7):
    for x in range(7):
        if (y,x)==XTOK: continue
        byres.setdefault((9*y+x)%16,[]).append((y,x))
assert all(len(v)==3 for v in byres.values()) and len(byres)==16
G0=[0,1,2,3,12,13,14,15]; G1=[4,5,6,7,8,9,10,11]
TOK=[[None]*16 for _ in range(3)]
for T in range(3):
    ev=sorted([byres[r][T] for r in range(0,16,2)]); od=sorted([byres[r][T] for r in range(1,16,2)])
    for c,t in zip(G0,ev): TOK[T][c]=t
    for c,t in zip(G1,od): TOK[T][c]=t
def nib(vals): return sum((v&15)<<(4*i) for i,v in enumerate(vals))
YT=[nib([t[0] for t in TOK[T]]) for T in range(3)]
XT=[nib([t[1] for t in TOK[T]]) for T in range(3)]
def lanemask(f): return sum(1<<l for l in range(64) if f(l))

P=Prog(); P.LDS_LAT=OPT["lat"]; P.wait_merge=OPT.get("wm",20)
SRDX=S(4,4); SRDO=S(8,4); SRDW=S(12,4)
sWV=S(30); sQ=S(31); sWY0=S(32); sWX0=S(33); sIDX0=S(34); sMAG=S(35); sMODE=S(36); sG=S(37); sK=S(38)
sT0,sT1,sT2,sT3,sT4,sT5=[S(40+i) for i in range(6)]
sOFF=S(46); sCLS=S(47); sCUR=S(48); sOFFS=S(49); sDX=S(50); sTHR=S(51); sOFFX=S(52); sM0=S(53); sI=S(54); sM0X=S(55)
sL1=S(56); sL2=S(57); sL3=S(58)
MK=[S(60+2*i,2) for i in range(12)]
sTAB=S(84,2); sTAB2=S(86,2)

def smov64(dst,val):
    lo=val&0xffffffff; hi=(val>>32)&0xffffffff
    P.s("s_mov_b32",dst[0],lo); P.s("s_mov_b32",dst[1],hi if hi!=lo else dst[0])

sSTI=S(95); vSTAMP=[None]
def stamp(rt=False):
    if not OPT["stamps"]: return
    P.raw("s_memrealtime s[88:89]" if (rt and OPT["stamps"] in (2,5)) else "s_memtime s[88:89]",wr={"s88","s89"}); P.raw("s_waitcnt lgkmcnt(0)",kind="wait0")
    P.s("s_mov_b32",M0,sSTI); P.raw(f"v_writelane_b32 {vSTAMP[0]}, s88, m0",kind="valu",rd={"s88","m0"},wr=vSTAMP[0].regs())
    P.s("s_add_u32",sSTI,sSTI,1); P.flush(False)
def stamp_end():
    if not OPT["stamps"]: return
    stamp()
    P.raw("s_memrealtime s[88:89]",wr={"s88","s89"}); P.raw("s_waitcnt lgkmcnt(0)",kind="wait0")
    P.raw(f"v_writelane_b32 {vSTAMP[0]}, s88, 63",kind="valu",rd={"s88"},wr=vSTAMP[0].regs())
    P.raw(f"v_writelane_b32 {vSTAMP[0]}, s3, 62",kind="valu",rd={"s3"},wr=vSTAMP[0].regs())
    P.v("v_mbcnt_lo_u32_b32",V(0),-1,0); P.v("v_mbcnt_hi_u32_b32",V(0),-1,V(0)); P.v("v_lshlrev_b32",V(0),2,V(0))
    P.s("s_mov_b32",SRDW[0],S(28)); P.s("s_mov_b32",SRDW[1],S(29)); P.s("s_mov_b32",SRDW[2],1<<28)
    P.s("s_lshl_b32",sT0,sQ,3); P.s("s_add_u32",sT0,sT0,sWV); P.s("s_lshl_b32",sT0,sT0,8)
    P.vst("buffer_store_dword",vSTAMP[0],V(0),SRDW,sT0,0); P.flush(False)
    if OPT.get("dbg") is not None:
        P.raw("s_memtime s[92:93]",wr={"s92","s93"}); P.raw("s_waitcnt lgkmcnt(0)",kind="wait0")
        P.raw(f"v_writelane_b32 {vSTAMP[0]}, s88, 15",kind="valu",rd={"s88"},wr=vSTAMP[0].regs())
        P.raw(f"v_writelane_b32 {vSTAMP[0]}, s3, 14",kind="valu",rd={"s3"},wr=vSTAMP[0].regs())
        P.raw(f"v_writelane_b32 {vSTAMP[0]}, s92, 13",kind="valu",rd={"s92"},wr=vSTAMP[0].regs())
        P.s("s_mov_b32",SRDW[0],S(26)); P.s("s_mov_b32",SRDW[1],S(27))
        P.s("s_cmp_eq_u32",sT0,(100*8+OPT["dbg"])*256); P.s("s_cselect_b32",SRDW[2],64,0)
        P.vst("buffer_store_dword",vSTAMP[0],V(0),SRDW,0,0); P.flush(False)
def barrier(name,vm=None):
    if OPT["stamps"]<3: stamp(True)
    P.barrier(vm)
    if OPT["stamps"]<3 or name=="B2": stamp()

def add_marks(start,preds,typ):
    if OPT["stamps"]!=4: return
    seg=P.out[start:]; out=[Ins("s_memtime s[16:17]","other",wr={"s16","s17"})]
    pos=[pr(seg) for pr in preds]
    for k,i in enumerate(seg):
        out.append(i)
        for m,p in enumerate(pos):
            if p==k: out.append(Ins(f"s_memtime s[{18+2*m}:{19+2*m}]" if m<3 else f"s_memtime s[{88+2*(m-3)}:{89+2*(m-3)}]","other"))
    P.out[start:]=out
    P.waitl0()
    regs=[16,18,20,22,88,90]
    for m in range(len(preds)+1):
        P.raw(f"v_writelane_b32 {vSTAMP[0]}, s{regs[m]}, {8+8*typ+m}",kind="valu",wr=vSTAMP[0].regs())
    P.flush(False)
def nth(kinds,n):
    def f(seg):
        idx=[k for k,i in enumerate(seg) if i.kind in kinds]
        return idx[n]
    return f
CT=16; CA=20
sTT=S(92); sTA=S(93); sPL=S(91)
SLOW=[]
chk=[0]
def sy_cmp(off,tgt):
    if off==CT: P.s("s_cmp_lt_u32",sPL,tgt)
    else:
        P.s("s_sub_u32",sPL,sPL,tgt); P.s("s_andn2_b32",sPL,0x80808080,sPL)
def sy_poll(vsy,vp,off,deps=()):
    i=P.dsr("ds_read_b32",vp,vsy,off); i.rd|=set(deps); return i
def sy_check(vsy,vp,off,tgt,token):
    chk[0]+=1; n=chk[0]
    def fn():
        P.v("v_readfirstlane_b32",sPL,vp)
        sy_cmp(off,tgt)
        P.add(Ins(f"s_cbranch_scc1 L_sw{n}","other",{"scc"},set()))
        P.add(Ins(f"L_sb{n}:","other",set(),set(),states=0,tag="soft"))
    b=P.bundle(fn); b.wr.add(token); b.cost=20
    SLOW.append((n,vsy,vp,off,tgt))
def sy_slow():
    for n,vsy,vp,off,tgt in SLOW:
        P.label(f"L_sw{n}")
        if OPT.get("sleep"): P.raw(f"s_sleep {OPT['sleep']}")
        P.dsr("ds_read_b32",vp,vsy,off); P.flush(False); P.waitl0()
        P.v("v_readfirstlane_b32",sPL,vp); sy_cmp(off,tgt); P.flush(False)
        P.branch("s_cbranch_scc1",f"L_sw{n}")
        P.branch("s_branch",f"L_sb{n}")
    SLOW.clear()
def sy_wait(vsy,vp,off,tgt):
    chk[0]+=1; n=chk[0]
    P.flush(False)
    P.label(f"L_sp{n}")
    P.dsr("ds_read_b32",vp,vsy,off); P.flush(False); P.waitl0()
    P.v("v_readfirstlane_b32",sPL,vp); P.s("s_cmp_lt_u32",sPL,tgt); P.flush(False)
    if OPT.get("sleep2"):
        P.branch("s_cbranch_scc0",f"L_sq{n}")
        P.raw(f"s_sleep {OPT['sleep2']}"); P.flush(False)
        P.branch("s_branch",f"L_sp{n}")
        P.label(f"L_sq{n}")
    else: P.branch("s_cbranch_scc1",f"L_sp{n}")
def sy_signal(vsy,off,data=None):
    data=data or vsy
    return P.add(Ins(f"ds_add_u32 {vsy}, {data} offset:{off}","dsw",vsy.regs()|data.regs(),set()))
def sy_init(vsy,tmp):
    P.v("v_mov_b32",tmp,0x00f00000); P.v("v_mov_b32",vsy,FLAG); P.v("v_cndmask_b32",vsy,tmp,vsy,S(88,2))
def spin_sync(off,va,vb,tag):
    P.v("v_mov_b32",va,FLAG+off); P.v("v_mov_b32",vb,1)
    P.s("s_mov_b64",EXEC,1)
    P.add(Ins(f"ds_add_u32 {va}, {vb}","dsw",va.regs()|vb.regs(),set()))
    P.s("s_mov_b64",EXEC,-1)
    P.flush(False); P.waitl0()
    P.label(f"L_spin{tag}")
    P.dsr("ds_read_b32",vb,va,0); P.v("v_readfirstlane_b32",sT0,vb); P.s("s_cmp_lt_u32",sT0,4); P.flush(False)
    P.branch("s_cbranch_scc1",f"L_spin{tag}")
class Pool:
    def __init__(s,bufs): s.b=bufs; s.i=0
    def get(s):
        r=s.b[s.i%len(s.b)]; s.i+=1; return r

P.label(KN)
P.raw("s_load_dwordx8 s[16:23], s[0:1], 0",wr={f"s{i}" for i in range(16,24)})
P.raw("s_load_dwordx4 s[24:27], s[0:1], 32",wr={f"s{i}" for i in range(24,28)})
if OPT["stamps"]:
    P.raw("s_load_dwordx2 s[28:29], s[0:1], 48",wr={"s28","s29"})
    P.raw("s_memrealtime s[88:89]",wr={"s88","s89"}); P.raw("s_waitcnt lgkmcnt(0)",kind="wait0"); P.s("s_mov_b32",S(3),S(88))
P.s("s_and_b32",sT0,S(2),7); P.s("s_lshl_b32",sT0,sT0,5); P.s("s_lshr_b32",sT1,S(2),3); P.s("s_add_u32",sQ,sT0,sT1)
if OPT.get("noxcd"): P.s("s_mov_b32",sQ,S(2))
P.s("s_cmp_ge_u32",S(2),256); P.s("s_cselect_b32",sQ,999,sQ)
P.s("s_cmp_ge_u32",sQ,NWG); P.flush(False); P.branch("s_cbranch_scc1","L_end")
if OPT.get("dly0"):
    for _ in range(OPT["dly0"]): P.raw("s_sleep 64")
vL=V(255)
P.v("v_lshrrev_b32",V(253),6,V(0)); P.v("v_and_b32",vL,63,V(0)); P.v("v_readfirstlane_b32",sWV,V(253))
P.s("s_mov_b32",sMODE,0); P.s("s_mov_b32",sSTI,0); P.s("s_mov_b32",SRDW[3],0x20000)
P.s("s_cmp_ge_u32",sWV,4); P.flush(False); P.branch("s_cbranch_scc1","L_T")

WQK=lambda f,j: V(12*f+4*j,4)
WV=lambda d,j: V(36+12*d+4*j,4)
VV=lambda w,d,ks: V(60+16*w+8*d+4*ks,4)
KT=lambda T: V(108+4*T,4)
QT=lambda T: V(124+4*T,4)
QX=lambda w: V(136+4*w,4)
class SB:
    def __init__(s,b): s.b=b
    def t(s,kt): return V(s.b+{2:2,0:6,1:10,3:14}[kt],4)
    def p(s,ks): return V(s.b+6,4) if ks==0 else V(s.b,4)
    def o(s,d): return s.t(1) if d==0 else s.t(3)
SXB=SB(148); SB0=SB(178); SB1=SB(196)
aH=V(148); aO1=V(178); aO2=V(196)
ONES=V(166,4)
CM=lambda w: V(170+2*w,4)
vCHK=V(171); vM=V(173); vM2=V(175); aSY=V(127); aPL=V(255); aONE=V(131)
HBASE=214
ACCP=[V(238+4*i,4) for i in range(4)]

def a_prefetch():
    if not OPT.get("pref"): return
    nsl=OPT["pref"]
    P.s("s_cmp_lg_u32",sWV,0); P.flush(False); P.branch("s_cbranch_scc1","L_nopref")
    P.raw("s_getpc_b64 s[84:85]",wr={"s84","s85"})
    P.flush(False); P.out.append(Ins("L_pc:","other",states=0,tag="soft"))
    P.s("s_lshr_b32",sT0,S(2),3); P.s("s_and_b32",sT0,sT0,7); P.s("s_lshl_b32",sT0,sT0,13)
    P.v("v_lshlrev_b32",V(250),7,vL); P.v("v_add_u32",V(250),sT0,V(250))
    P.raw(f"v_min_u32 v250, L_hotend-L_pc, v250",kind="valu",rd={"v250"},wr={"v250"})
    P.raw("global_load_dword v251, v250, s[84:85]",kind="vld",rd={"v250","s84","s85"},wr={"v251"})
    P.flush(False)
    P.label("L_nopref")
def a_prologue():
    a_prefetch()
    l16=V(200); g=V(201); t=V(202); r=V(203); c=V(204); a0=V(205); aZ=V(206); aY=V(207); aV1=V(208); x=V(209); y=V(210); z=V(211); ad=V(236)
    P.v("v_lshlrev_b32",l16,4,vL)
    def wdma(part):
        lo,hi=(0,OPT.get('wearly',0)) if part==0 else (OPT.get('wearly',0),14)
        if lo==hi: return
        if lo==0: P.s("s_mov_b32",SRDW[0],S(20)); P.s("s_mov_b32",SRDW[1],S(21)); P.s("s_mov_b32",SRDW[2],55296)
        if lo==0: P.s("s_and_b32",sT0,sQ,31); P.s("s_mul_i32",sT0,sT0,OPT.get("rot",13)); P.s("s_add_u32",sT0,sT0,sWV)
        if lo==0: P.s("s_mul_i32",sT5,sT0,1214); P.s("s_lshr_b32",sT5,sT5,16); P.s("s_mul_i32",sT5,sT5,54); P.s("s_sub_u32",sT0,sT0,sT5)
        if lo==0: P.s("s_lshl_b32",sT4,sT0,10)
        for n in range(lo,hi):
            if OPT.get("wfirst")==n: P.flush(False); barrier("BE")
            P.s("s_add_u32",M0,sT4,WSTG)
            P.dma(l16,SRDW,sT4)
            if n<13:
                P.s("s_add_u32",sT4,sT4,4096); P.s("s_cmp_ge_u32",sT4,55296); P.s("s_cselect_b32",sT5,55296,0); P.s("s_sub_u32",sT4,sT4,sT5)
    if OPT.get("wearly",0): P.flush(False); P.waitl0(); wdma(0)
    P.s("s_mul_i32",sT1,sWV,48); P.s("s_add_u32",sT1,sT1,WSTG)
    P.v("v_lshrrev_b32",g,4,vL); P.v("v_and_b32",t,15,vL); P.v("v_lshrrev_b32",r,2,t); P.v("v_and_b32",c,3,vL)
    P.v("v_lshrrev_b32",x,1,g); P.v("v_lshlrev_b32",x,4,x); P.v("v_and_b32",y,1,g); P.v("v_lshlrev_b32",y,2,y)
    P.v("v_add3_u32",x,x,y,r); P.v("v_mul_u32_u24",x,576,x)
    P.v("v_add_u32",x,sT1,x)
    P.v("v_lshl_add_u32",a0,c,3,x)
    P.v("v_lshrrev_b32",y,1,c); P.v("v_lshl_add_u32",aV1,y,3,x); P.v("v_add_u32",aV1,32,aV1)
    P.v("v_and_b32",y,1,c); P.v("v_mul_u32_u24",y,192,y)
    P.v("v_add_u32",aZ,aV1,y)
    P.v("v_sub_u32",aY,aV1,y); P.v("v_add_u32",aY,192,aY)
    P.v("v_add_u32",aH,R1,l16)
    P.s("s_lshr_b32",sT0,sWV,1); P.s("s_mul_i32",sT0,sT0,1024); P.s("s_and_b32",sT2,sWV,1); P.s("s_lshl_b32",sT2,sT2,3)
    P.s("s_add_u32",sT0,sT0,sT2); P.s("s_add_u32",sT0,sT0,R2); P.v("v_add_u32",aO1,sT0,l16)
    P.s("s_lshl_b32",sT0,sWV,2); P.s("s_add_u32",sT0,sT0,R2+2048); P.v("v_add_u32",aO2,sT0,l16)
    for w in range(3): smov64(MK[w],lanemask(lambda l:(l&15)==4*w))
    smov64(MK[3],lanemask(lambda l:(l&3)>=2))
    for w in range(3): smov64(MK[4+w],lanemask(lambda l:(l>>4)==w))
    smov64(MK[7],lanemask(lambda l:(l>>4)==((l&15)>>2)))
    smov64(MK[8],lanemask(lambda l:((l>>2)&1)==0))
    smov64(MK[9],lanemask(lambda l:((l>>2)&1)==((l>>1)&1)))
    P.s("s_mov_b32",sTHR,f2u(OPT["thr"]) if not OPT["force_slow"] else f2u(0.0))
    P.v("v_mov_b32",x,0x3f800000)
    for i in range(4): P.v("v_cndmask_b32",ONES[i],0,x,MK[3])
    P.v("v_mov_b32",x,0xff800000)
    for w in range(4): P.v("v_cndmask_b32",CM(w)[0],x,0,MK[4+w])
    for T in range(4): P.v("v_mov_b32",KT(T)[3],0)
    for T in range(3):
        P.v("v_mov_b32",QT(T)[3],0)
        for i in range(4): P.v("v_mov_b32",QX(T)[i],0)
        for d in range(2): P.v("v_mov_b32",VV(T,d,1)[0],0)
    P.v("v_mov_b32",vCHK,0)
    P.v("v_mov_b32",y,FLAG); P.dsw("ds_write_b32",y,vCHK,0); P.dsw("ds_write_b32",y,vCHK,4); P.dsw("ds_write_b32",y,vCHK,8); P.dsw("ds_write_b32",y,vCHK,CT); P.dsw("ds_write_b32",y,vCHK,CA)
    P.s("s_mov_b64",S(88,2),1); sy_init(aSY,x)
    P.s("s_lshl_b32",sT0,sWV,3); P.s("s_lshl_b32",sT0,1,sT0); P.v("v_mov_b32",aONE,sT0)
    P.flush(False)
    if OPT.get("wfirst")is None: barrier("BE")
    else: P.waitl0()
    wdma(1)
    P.s("s_mov_b64",VCC,MK[9])
    P.flush(False)
    if OPT.get("fine"): stamp()
    P.waitv(0)
    if OPT.get("fine"): stamp()
    spin_sync(8,x,y,"A")
    P.raw(f"s_setprio {OPT.get('trprio',2)}"); P.flush(False)
    if OPT.get("fine"): P.flush(False); stamp()
    for j in range(3):
        for hh in range(2):
            off=(32*j+8*hh)*576
            P.dsr("ds_read_b64_tr_b16",WQK(1,j)[2*hh:2*hh+2],aZ,off)
            P.dsr("ds_read_b64_tr_b16",V(212+4*j+2*hh,2),aY,off)
            P.dsr("ds_read_b64_tr_b16",WV(1,j)[2*hh:2*hh+2],aV1,off+384)
    for j in range(3):
        for hh in range(2):
            off=(32*j+8*hh)*576
            P.dsr("ds_read_b64_tr_b16",WQK(0,j)[2*hh:2*hh+2],a0,off)
            P.dsr("ds_read_b64_tr_b16",WQK(2,j)[2*hh:2*hh+2],a0,off+192)
            P.dsr("ds_read_b64_tr_b16",WV(0,j)[2*hh:2*hh+2],a0,off+384)
    for j in range(3):
        for i in range(4):
            P.v("v_cndmask_b32_dpp",WQK(1,j)[i],V(212+4*j+i),WQK(1,j)[i],VCC,mod="quad_perm:[2,3,0,1] row_mask:0xf bank_mask:0xf")
    P.s("s_mov_b64",VCC,MK[8])
    for j in range(3):
        for i in range(4):
            P.v("v_cndmask_b32_dpp",V(224+4*j+i),WV(1,j)[i],WV(1,j)[i],VCC,mod="quad_perm:[2,3,0,1] row_mask:0xf bank_mask:0xf")
    for j in range(3):
        for i in range(4):
            P.v("v_cndmask_b32",WV(1,j)[i],V(224+4*j+i),0,MK[3])
    P.flush(True)
    P.raw("s_setprio 0"); P.flush(False)
    barrier("B1")
def a_guard():
    x=V(209); y=V(210)
    for d in range(2):
        P.v("v_mov_b32",x,0)
        for j in range(3):
            for i in range(4):
                P.v("v_and_b32",y,0x7fff7fff,WV(d,j)[i]); P.v("v_pk_max_u16",x,x,y)
        P.v("v_lshrrev_b32",y,16,x); P.v("v_and_b32",x,0xffff,x); P.v("v_max_u32",x,x,y)
        P.v("v_cmp_lt_u32",VCC,(127+50)<<7,x)
        P.s("s_cmp_lg_u64",VCC,0); P.s("s_cselect_b32",sTHR,f2u(-1.0),sTHR)
        P.v("v_subrev_u32",x,1,x); P.v("v_cmp_gt_u32",VCC,(127-30)<<7,x)
        P.s("s_cmp_lg_u64",VCC,0); P.s("s_cselect_b32",sTHR,f2u(-1.0),sTHR)

class AState: pass
AS=AState()
def a_begin():
    AS.hp=Pool([V(HBASE+4*i,4) for i in range(6)]); AS.ap=Pool(ACCP)
def a_load(off):
    h=[AS.hp.get() for _ in range(3)]
    for j in range(3): P.dsr("ds_read_b128",h[j],aH,off+1024*j,mem={"OKT"})
    return h
def a_chain(h,ch,kind,w,T):
    acc=AS.ap.get()
    if ch<3:
        for j in range(3): P.mfma(acc,WQK(ch,j),h[j],0 if j==0 else acc)
    else:
        d=ch-3
        for j in range(3): P.mfma(acc,h[j],WV(d,j),(0 if d==0 else ONES) if j==0 else acc)
    k=KT(T)
    def qx(pairs):
        for dst,a_,b_ in pairs:
            P.cvt(acc[a_],acc[a_],acc[b_])
            for ww in range(3): P.v("v_cndmask_b32",QX(ww)[dst],0,acc[a_],MK[ww])
    if ch==0:
        if kind=="x": qx([(0,0,1),(1,2,3)])
        else: P.cvt(QT(T)[0],acc[0],acc[1]); P.cvt(QT(T)[1],acc[2],acc[3])
    elif ch==1:
        P.cvt(k[2],acc[2],acc[3])
        if kind=="x": qx([(2,0,1)])
        else: P.cvt(QT(T)[2],acc[0],acc[1])
    elif ch==2:
        P.cvt(k[0],acc[0],acc[1]); P.cvt(k[1],acc[2],acc[3])
    else:
        d=ch-3
        if kind=="x":
            for ww in range(2): P.cvt(VV(ww,d,1)[1],acc[0],acc[1])
        else:
            dst=VV(w,d,T>>1); o=2*(T&1) if T<2 else 2
            P.cvt(dst[o],acc[0],acc[1]); P.cvt(dst[o+1],acc[2],acc[3])

def a_norm_store(oa0,oa1,off,usemax):
    r=oa1[3]; l=oa1[2]
    P.v("v_rcp_f32",r,l)
    if not usemax: P.v("v_max3_f32",vCHK,vCHK,l,r)
    P.v("v_mul_f32",r,f2u(1.0/math.sqrt(c_scale)),r)
    for i in range(4): P.v("v_mul_f32",oa0[i],oa0[i],r)
    for i in range(2): P.v("v_mul_f32",oa1[i],oa1[i],r)
    P.cvt(oa0[0],oa0[0],oa0[1]); P.cvt(oa0[1],oa0[2],oa0[3]); P.cvt(oa1[0],oa1[0],oa1[1])
    for i in (P.dsw("ds_write_b64",aO1,oa0[0:2],off), P.dsw("ds_write_b32",aO2,oa1[0],off)): i.rd|={"OKT","OW"}

def a_softmax(sb,usemax):
    regs=[(kt,i) for kt in range(3) for i in range(4)]+[(3,0)]
    if usemax:
        m=vM; m2=vM2
        P.v("v_max3_f32",m,sb.t(0)[0],sb.t(0)[1],sb.t(0)[2])
        rest=[sb.t(kt)[i] for kt,i in regs[3:]]
        for a in range(0,10,2): P.v("v_max3_f32",m,m,rest[a],rest[a+1])
        P.v("v_mov_b32",m2,m); P.v("v_permlane16_swap_b32",m,m2); P.v("v_max_f32",m,m,m2)
        P.v("v_mov_b32",m2,m); P.v("v_permlane32_swap_b32",m,m2); P.v("v_max_f32",m,m,m2)
        for kt,i in regs: P.v("v_sub_f32",sb.t(kt)[i],sb.t(kt)[i],m)
    p0=sb.p(0); p1=sb.p(1)
    for kt in range(4):
        s=sb.t(kt)
        for i in range(4 if kt<3 else 1): P.v("v_exp_f32",s[i],s[i])
        if kt<2: P.cvt(p0[2*kt],s[0],s[1]); P.cvt(p0[2*kt+1],s[2],s[3])
        elif kt==2: P.cvt(p1[2],s[0],s[1]); P.cvt(p1[3],s[2],s[3])
        else: P.cvt(p1[1],s[0],0)

def a_S(sb,q,w):
    for kt in range(4): P.mfma(sb.t(kt),KT(kt),QT(q),0 if kt<3 else CM(w))
def a_SX(w):
    for kt in range(4): P.mfma(SXB.t(kt),KT(kt),QX(w),(0 if kt<3 else CM(3)) if w==0 else SXB.t(kt))
def a_job(sb,q,w,usemax):
    a_softmax(sb,usemax)
    for d in (1,0):
        P.mfma(sb.o(d),VV(w,d,0),sb.p(0),0); P.mfma(sb.o(d),VV(w,d,1),sb.p(1),sb.o(d))
    a_norm_store(sb.o(0),sb.o(1),OS[w]+3072*q,usemax)
def a_xjob(usemax):
    sb=SXB
    a_softmax(sb,usemax)
    for d in (1,0):
        P.mfma(sb.o(d),VV(0,d,0),sb.p(0),0); P.mfma(sb.o(d),VV(0,d,1),sb.p(1),sb.o(d))
    for ww in (1,2):
        for d,n in ((1,3),(0,4)):
            acc=AS.ap.get()
            P.mfma(acc,VV(ww,d,0),sb.p(0),0); P.mfma(acc,VV(ww,d,1),sb.p(1),acc)
            for i in range(n): P.v("v_cndmask_b32",sb.o(d)[i],sb.o(d)[i],acc[i],MK[ww])
    a_norm_store(sb.o(0),sb.o(1),OX,usemax)

def prio_wrap(start,pr):
    seg=P.out[start:]
    n=len(seg); up=set(); down=set()
    isds=lambda i:i.kind in("dsr","dsw")
    mf=[k for k,i in enumerate(seg) if i.kind in MF]
    hi=[False]*n
    for k,i in enumerate(seg):
        if isds(i):
            prev=[m for m in mf if m<k]; nxt=[m for m in mf if m>k]
            a=prev[-2] if len(prev)>=2 else -1
            b=nxt[0] if nxt else n-1
            for x in range(a+1,b+1): hi[x]=True
    out=[]; cur=False
    for k,i in enumerate(seg):
        if hi[k]!=cur:
            out.append(Ins(f"s_setprio {pr if hi[k] else 0}","other")); cur=hi[k]
        out.append(i)
    if cur: out.append(Ins("s_setprio 0","other"))
    P.out[start:]=out
def a_step(w,usemax,attn=True,qkv=True):
    st0=len(P.out)
    wn=(w+1)%3
    a_begin()
    Hn=lambda T: HS[wn]+3072*T
    if attn and qkv:
        P.s("s_add_u32",sTT,sTT,4*FLAG)
        sy_poll(aSY,aPL,CT); sy_check(aSY,aPL,CT,sTT,"OKT")
    if not attn:
        hx=a_load(HX); h0=a_load(Hn(0))
        for ch in range(5): a_chain(hx,ch,"x",0,3)
        h1=a_load(Hn(1))
        for ch in range(5): a_chain(h0,ch,"n",wn,0)
        h2=a_load(Hn(2))
        for ch in range(5): a_chain(h1,ch,"n",wn,1)
        for ch in range(5): a_chain(h2,ch,"n",wn,2)
    elif not qkv:
        a_S(SB0,0,w); a_SX(w); a_S(SB1,1,w)
        a_job(SB0,0,w,usemax); a_S(SB0,2,w)
        if w==2: a_xjob(usemax)
        a_job(SB1,1,w,usemax); a_job(SB0,2,w,usemax)
    elif w!=2:
        h0=a_load(Hn(0)); h1=a_load(Hn(1))
        if OPT.get("atop"): P.flush(False)
        if w==0:
            for d in range(2): P.v("v_mov_b32",VV(2,d,1)[1],VV(0,d,1)[1])
        a_S(SB0,0,w); a_S(SB1,1,w); a_SX(w)
        for ch in (3,4,0): a_chain(h0,ch,"n",wn,0)
        a_job(SB0,0,w,usemax)
        for ch in (3,4,0): a_chain(h1,ch,"n",wn,1)
        a_S(SB0,2,w)
        for ch in (1,2): a_chain(h0,ch,"n",wn,0)
        h2=a_load(Hn(2))
        a_job(SB1,1,w,usemax)
        for ch in (1,2): a_chain(h1,ch,"n",wn,1)
        a_job(SB0,2,w,usemax)
        for ch in range(5): a_chain(h2,ch,"n",wn,2)
    else:
        h0=a_load(Hn(0)); h1=a_load(Hn(1))
        if OPT.get("atop"): P.flush(False)
        a_S(SB0,0,w); a_SX(w); a_S(SB1,1,w)
        a_chain(h0,0,"n",wn,0); a_chain(h1,0,"n",wn,1)
        a_job(SB0,0,w,usemax)
        a_S(SB0,2,w)
        a_xjob(usemax)
        for ch in (1,2,3,4): a_chain(h0,ch,"n",wn,0)
        h2=a_load(Hn(2))
        a_job(SB1,1,w,usemax)
        for ch in (1,2,3,4): a_chain(h1,ch,"n",wn,1)
        hx=a_load(HX)
        a_job(SB0,2,w,usemax)
        for ch in range(5): a_chain(h2,ch,"n",wn,2)
        for ch in range(5): a_chain(hx,ch,"x",0,3)
    if attn:
        i=sy_signal(aSY,CA,aONE); i.wr.add("OW")
    if OPT.get("noA"): P.cur=[]; P.last_len=0
    if OPT.get("Aonly"): P.cur=[i for i in P.cur if i.kind in OPT["Aonly"]]
    P.flush(True,mf_gap=OPT["gapA"])
    if OPT.get("aprio"): prio_wrap(st0,OPT["aprio"])
    if attn and qkv and not usemax: add_marks(st0,[nth(MF,x) for x in OPT["amarks"]] if OPT.get("amarks") else [nth(MF,11),nth(MF,12),nth(MF,36),nth(MF,60),nth(("dsw",),-1)],w)

def a_pass(usemax,tag):
    P.s("s_mov_b32",sTT,0); P.s("s_mov_b32",sG,0)
    a_step(2,usemax,attn=False)
    P.waitl0()
    if OPT["stamps"]: stamp()
    P.label(f"L_A{tag}loop")
    a_step(0,usemax)
    if OPT["stamps"]==1: stamp()
    if OPT["stamps"]==5: stamp(); stamp(True)
    a_step(1,usemax)
    if OPT["stamps"]==5: stamp(); stamp(True)
    if OPT["stamps"]==1: stamp()
    P.s("s_add_u32",sG,sG,1); P.s("s_cmp_eq_u32",sG,7); P.flush(False); P.branch("s_cbranch_scc1",f"L_A{tag}last")
    a_step(2,usemax)
    if OPT["stamps"]==5: stamp(); stamp(True)
    if OPT["stamps"]==1: stamp()
    P.branch("s_branch",f"L_A{tag}loop")
    P.label(f"L_A{tag}last")
    a_step(2,usemax,qkv=False)

vSTAMP[0]=V(254); stamp()
a_prologue()
if OPT["prioA"]: P.raw(f"s_setprio {OPT['prioA']}")
a_pass(False,"f")
a_guard()
if OPT.get("noA") or OPT.get("noT") or OPT.get("Aonly"): P.v("v_mov_b32",vCHK,0)
P.v("v_cmp_nge_f32",VCC,sTHR,vCHK); P.v("v_mov_b32",V(238),FLAG); P.v("v_mov_b32",V(239),1)
P.flush(False)
P.branch("s_cbranch_vccz","L_Anoflag")
P.dsw("ds_write_b32",V(238),V(239),0); P.flush(False); P.waitl0()
P.label("L_Anoflag")
P.barrier()
P.dsr("ds_read_b32",V(239),V(238),0); P.v("v_cmp_ne_u32",VCC,0,V(239)); P.flush(False)
P.branch("s_cbranch_vccnz","L_Asafe")
stamp_end()
P.raw("s_endpgm"); P.flush(False)
sy_slow()
def emit_safe():
    P.max_lds=12
    P.label("L_Asafe")
    st=OPT["stamps"]; OPT["stamps"]=0
    P.v("v_mov_b32",V(239),0); P.dsw("ds_write_b32",V(238),V(239),CT); P.dsw("ds_write_b32",V(238),V(239),CA); P.flush(False)
    P.barrier(); P.barrier()
    a_pass(True,"s")
    P.barrier()
    P.raw("s_endpgm"); P.flush(False)
    sy_slow()
    OPT["stamps"]=st

CW=lambda c,k: V(12*c+4*k,4)
vIDX=V(72); vA1=V(73); vA2=V(74); vBP=V(75)
WO=lambda j,e,p: V(76+24*j+12*e+4*p,4)
PERM=lambda e: V(148+4*e,4)
TONES=V(156,4)
ACC=lambda c: V(160+4*c,4)
XBR=lambda j: V(184+4*j,4)
SUM=V(196,4); GRAM=V(200,4)
vK2=V(204); vLW=V(205); vLX=V(206); vLO=V(207); vLXX=V(208)
vDM=[V(209),V(210)]; vDC=[V(211),V(212)]
tSY=V(214); tPL=V(215)
vST=[V(217),V(218)]; vXSB=V(219); vXS=V(220)
vRS=V(221); vB=V(222); vT=V(223); vTAB=V(224); vQ=V(225); vXI=V(226); vTT=V(227)
CH0=[0,1,4,5,8,9]
sROW=S(59); sEDGE=S(39); sNR=S(94)
mL=MK[8]; mR=MK[9]; m53=MK[10]; m39=MK[11]
DWSTG=XSL[2]

MID=[]
def t_conv(base,rowu,p4,p8):
    off=lambda i,j,c0: base+16*(rowu*i+13*j+c0)
    for c in range(6):
        c0=CH0[c]
        b0=p4.get(); b1=p8.get(); b2=p8.get()
        P.dsr("ds_read_b128",b0,vA1,off(1,1,c0))
        P.dsr("ds_read_b128",b1[0:4],vA1,off(0,0,c0)); P.dsr("ds_read_b128",b1[4:8],vA1,off(1,0,c0))
        P.dsr("ds_read_b128",b2[0:4],vA1,off(2,0,c0)); P.dsr("ds_read_b128",b2[4:8],vA2,off(0,2,c0))
        P.mfma(ACC(c),CW(c,0),b0,0).wr.add(f"CV{c}"); P.smfmac(ACC(c),CW(c,1),b1,vIDX); P.smfmac(ACC(c),CW(c,2),b2,vIDX)
        x=XBR(c>>1); o=2*(c&1)
        P.cvt(x[o],ACC(c)[0],ACC(c)[1]); P.cvt(x[o+1],ACC(c)[2],ACC(c)[3])
        if c&1:
            j=c>>1
            P.mfma(GRAM,XBR(j),XBR(j),0 if j==0 else GRAM); P.mfma(SUM,TONES,XBR(j),0 if j==0 else SUM)
    P.v("v_cndmask_b32",vT,GRAM[0],GRAM[1],MK[1]); P.v("v_cndmask_b32",vT,vT,GRAM[2],MK[2]); P.v("v_cndmask_b32",vT,vT,GRAM[3],MK[3])
    i=P.bperm(vQ,vBP,vT); i.wr.add("GAP")
    if MID: MID.pop()()
    P.v("v_mul_f32",vRS,SUM[0],SUM[0])
    P.v("v_fmamk_f32",vRS,vRS,f2u(-1.0/(96*96*c_scale)),vK2)
    P.v("v_mul_f32",vB,f2u(-1.0/96),SUM[0])
    P.v("v_fmamk_f32",vT,vQ,f2u(1.0/(96*c_scale)),vRS,extra_wr={"LNGO"})
    P.v("v_max_f32",vT,vT,vK2)
    P.v("v_rsq_f32",vRS,vT)
    P.v("v_mul_f32",vB,vB,vRS)
def t_xbw(addrX,offX):
    for j in range(3): P.dsw("ds_write_b128",addrX,XBR(j),offX+1024*j)
def t_ln(addrH,offH):
    for c in range(6):
        for i in range(4): P.v("v_fma_f32",ACC(c)[i],ACC(c)[i],vRS,vB)
        h=ACC(c&~1); o=2*(c&1)
        P.cvt(h[o],ACC(c)[0],ACC(c)[1]); P.cvt(h[o+1],ACC(c)[2],ACC(c)[3])
        if c&1: P.dsw("ds_write_b128",addrH,h,offH+1024*(c>>1)).rd.add("OKA")

def t_unit(jw,ob,xb,acc,voff,soff,stoff,dep=None):
    for e in range(2):
        i=P.mfma(acc[e],PERM(e),xb,0)
        if dep: i.rd.add(dep)
        for p in range(3): P.mfma(acc[e],WO(jw,e,p),ob[p],acc[e])
    pk=acc[0]
    for e in range(2):
        P.cvt(pk[2*e],acc[e][0],acc[e][1]); P.cvt(pk[2*e+1],acc[e][2],acc[e][3])
    P.vst("buffer_store_dwordx4",pk,voff,SRDO,soff,stoff,mod=OPT.get("stmod",""))
    if OPT.get("st2"): P.vst("buffer_store_dwordx4",pk,voff,SRDO,soff,stoff,mod=OPT.get("stmod",""))

uid=[0]
def t_lookup(lane_s,dst,nr,nrec,cls=None):
    P.v("v_readlane_b32",dst,vTAB,lane_s)
    if cls is not None: P.s("s_and_b32",cls,dst,63)
    P.s("s_cmp_lt_u32",dst,INV); P.s("s_cselect_b32",nr,nrec,0)
    P.s("s_and_b32",dst,dst,0x3fffffc0)
def t_dma_prep():
    P.s("s_add_u32",sL1,sK,12)
    t_lookup(sL1,sOFF,sNR,XBYTES+BIAS,sCLS)
    P.s("s_add_u32",sOFF,sOFF,sROW)
    P.s("s_cmp_eq_u32",sCLS,sCUR)
    P.flush(False)
    uid[0]+=1; lab=f"L_cls{uid[0]}"
    P.branch("s_cbranch_scc1",lab)
    P.s("s_mov_b32",sCUR,sCLS)
    for n,(bit,m) in enumerate(((8,mL),(16,mR))):
        P.s("s_and_b32",sT0,sCLS,bit); P.s("s_cselect_b64",sTAB,m,0)
        P.v("v_or_b32",vTT,0x80000000,vDC[n]); P.v("v_cndmask_b32",vDM[n],vDC[n],vTT,sTAB)
    P.flush(False)
    P.label(lab)
def t_dma_rows(is3,slot,deps=()):
    nr=3 if is3 else 2
    for r in range(nr):
        edge = (r==nr-1) if is3 else (r==0)
        def fn():
            if edge:
                P.s("s_and_b32",sT0,sCLS,sEDGE); P.s("s_cselect_b32",SRDX[2],0,sNR)
            else: P.s("s_mov_b32",SRDX[2],sNR)
            P.s("s_add_u32",M0,sM0,XSL[slot]+117*16*r); P.s("s_add_u32",sT1,sOFF,ROWB*r)
            P.dma(vDM[0],SRDX,sT1,mod=OPT.get("ldmod",""))
            P.s("s_add_u32",M0,sM0,XSL[slot]+117*16*r+1024); P.s("s_mov_b64",EXEC,m53)
            P.dma(vDM[1],SRDX,sT1,mod=OPT.get("ldmod",""))
            P.s("s_mov_b64",EXEC,-1)
        bd=P.bundle(fn); bd.cost=OPT.get("dmacost",128)
        if r<len(deps) and deps[r]: bd.rd.add(deps[r])
        if r<OPT.get("dmafirst",0): P.flush(False)
    return 2*nr
def t_dma_xx(dep=None):
    P.s("s_add_u32",sL2,sK,sI); P.s("s_add_u32",sL2,sL2,12)
    t_lookup(sL2,sOFFX,sT4,XBYTES+BIAS)
    def fn():
        P.s("s_mov_b32",SRDX[2],sT4); P.s("s_mov_b64",EXEC,m39)
        for r in range(3):
            P.s("s_add_u32",M0,sM0X,XX+39*16*r); P.s("s_add_u32",sT1,sOFFX,(XTOK[0]+r)*ROWB+XTOK[1]*192)
            P.dma(vDC[0],SRDX,sT1,mod=OPT.get("ldmod",""))
        P.s("s_mov_b64",EXEC,-1)
    bd=P.bundle(fn); bd.cost=OPT.get("dmacost",128)
    if dep: bd.rd.add(dep)
    return 3
def t_store_setup():
    P.s("s_add_u32",sL3,sK,7)
    t_lookup(sL3,sOFFS,SRDO[2],XBYTES)

def tok_extract(dy,dx,sh):
    P.v("v_lshrrev_b64",V(250,2),sh,sTAB); P.v("v_and_b32",dy,7,V(250))
    P.v("v_lshrrev_b64",V(250,2),sh,sTAB2); P.v("v_and_b32",dx,7,V(250))
LATE=[]
def t_late():
    df=OPT["dmafirst"]; OPT["dmafirst"]=0
    is3,n=LATE.pop(); t_dma_rows(is3,n,deps=("GAP","GAP","GAP")); OPT["dmafirst"]=df
def t_start_dma(is3,n,late=False):
    P.s("s_mov_b32",sK,n-4); t_dma_prep()
    if late:
        LATE.append((is3,n)); return 6 if is3 else 4
    c=t_dma_rows(is3,n)
    if n==0 and not is3: c+=t_dma_xx()
    return c
def t_init_state(is3):
    if is3: P.v("v_add_u32",vLXX,XBX0,vLW)
    else: P.v("v_add_u32",vLXX,XBX0,vLX)
    P.s("s_mov_b32",sDX,XBX1-XBX0)

def t_prologue(is3):
    g=V(228); t=V(229); x=V(230); y=V(231); z=V(232); u=V(233); l16=V(234); sh=V(235); pi=V(236); py=V(237); px=V(238); cc=V(239)
    wa=[V(240),V(241),V(242)]
    P.s("s_sub_u32",sI,sWV,4)
    P.s("s_mul_i32",sT0,sQ,898); P.s("s_lshr_b32",sT0,sT0,16)
    P.s("s_mul_i32",sT1,sT0,73); P.s("s_sub_u32",sT1,sQ,sT1)
    P.s("s_mul_i32",sWX0,sT0,21); P.s("s_mul_i32",sT2,sT1,21)
    P.s("s_cmp_eq_u32",sT0,3)
    P.s("s_cselect_b32",sWY0,0,sT1); P.s("s_cselect_b32",sIDX0,sT2,0); P.s("s_cselect_b32",sMAG,6554,0)
    P.v("v_subrev_u32",u,8,vL)
    if OPT.get("map","band")=="band":
        P.v("v_add_u32",x,sIDX0,u)
        P.v("v_mul_u32_u24",y,sMAG,x); P.v("v_lshrrev_b32",y,16,y); P.v("v_mul_u32_u24",z,10,y); P.v("v_sub_u32",x,x,z)
        P.v("v_add_u32",y,sWY0,y); P.v("v_add_u32",x,sWX0,x)
    else:
        P.v("v_and_b32",x,31,u); P.v("v_lshlrev_b32",x,8,x); P.v("v_add_u32",x,sQ,x)
        P.v("v_mul_u32_u24",y,57457,x); P.v("v_lshrrev_b32",y,22,y); P.v("v_mul_u32_u24",z,73,y); P.v("v_sub_u32",x,x,z)
    P.v("v_mul_u32_u24",z,7*ROWB,y); P.v("v_mul_u32_u24",pi,7*192,x); P.v("v_add3_u32",vTAB,z,pi,4)
    P.v("v_cmp_eq_u32",MK[0],0,y); P.v("v_cmp_eq_u32",MK[2],0,x); P.s("s_movk_i32",sT0,72)
    P.v("v_cmp_eq_u32",MK[1],sT0,y); P.v("v_cmp_eq_u32",MK[3],sT0,x)
    P.v("v_cmp_gt_u32",MK[4],NWIN,u); P.v("v_cmp_ge_u32",MK[5],sT0,y)
    P.v("v_cndmask_b32",z,0,1,MK[0]); P.v("v_cndmask_b32",pi,0,2,MK[1]); P.v("v_or3_b32",vTAB,vTAB,z,pi)
    P.v("v_cndmask_b32",z,0,8,MK[2]); P.v("v_cndmask_b32",pi,0,16,MK[3]); P.v("v_or3_b32",vTAB,vTAB,z,pi)
    P.s("s_and_b64",MK[4],MK[4],MK[5]); P.v("v_mov_b32",z,INV|4); P.v("v_cndmask_b32",vTAB,z,vTAB,MK[4])
    for n in range(2):
        P.v("v_add_u32",u,64*n,vL)
        P.v("v_mul_u32_u24",pi,5042,u); P.v("v_lshrrev_b32",pi,16,pi)
        P.v("v_sub_u32",x,u,pi); P.v("v_lshlrev_b32",x,4,x)
        smov64(sTAB,lanemask(lambda l:(64*n+l)%13==12))
        P.v("v_or_b32",y,0x80000000,x); P.v("v_cndmask_b32",vDC[n],x,y,sTAB)
    smov64(mL,lanemask(lambda l:l<13)); smov64(mR,lanemask(lambda l:64+l>=104))
    smov64(m53,lanemask(lambda l:l<53)); smov64(m39,lanemask(lambda l:l<39))
    P.s("s_mul_i32",sROW,sI,2*ROWB); P.s("s_mul_i32",sM0,sI,2*117*16); P.s("s_mul_i32",sM0X,sI,132*16); P.s("s_mov_b32",sCUR,4)
    P.v("v_mov_b32",vDM[0],vDC[0]); P.v("v_mov_b32",vDM[1],vDC[1])
    if is3: P.s("s_mov_b32",sEDGE,2)
    else: P.s("s_cmp_eq_u32",sI,0); P.s("s_cselect_b32",sEDGE,1,0)
    P.v("v_lshlrev_b32",l16,4,vL)
    P.flush(False); P.waitl0()
    if OPT.get("fine"): stamp()
    P.s("s_sub_u32",SRDX[0],S(16),BIAS); P.s("s_subb_u32",SRDX[1],S(17),0); P.s("s_mov_b32",SRDX[2],XBYTES+BIAS); P.s("s_mov_b32",SRDX[3],0x20000)
    P.s("s_mov_b32",SRDW[0],S(18)); P.s("s_mov_b32",SRDW[1],S(19)); P.s("s_mov_b32",SRDW[2],1728)
    P.s("s_lshl_b32",sT5,sI,11); P.s("s_add_u32",sT5,sT5,DWSTG)
    P.s("s_mov_b32",M0,sT5); P.dma(l16,SRDW,0); P.dma(l16,SRDW,0,1024)
    n0=t_start_dma(is3,0)
    n1=0
    if OPT.get("x1",0)==1: n1=t_start_dma(is3,1)
    P.flush(False)
    if not OPT.get("belate"): barrier("BE")
    P.s("s_mov_b32",SRDO[0],S(24)); P.s("s_mov_b32",SRDO[1],S(25)); P.s("s_mov_b32",SRDO[2],XBYTES); P.s("s_mov_b32",SRDO[3],0x20000)
    P.v("v_lshrrev_b32",g,4,vL); P.v("v_and_b32",t,15,vL); P.v("v_lshlrev_b32",sh,2,t)
    P.v("v_lshrrev_b32",x,3,t); P.v("v_lshlrev_b32",x,3,x); P.v("v_add_u32",x,x,t); P.v("v_lshlrev_b32",x,1,x); P.v("v_add_u32",x,sT5,x)
    taps=[[5,5,5,5],[0,1,3,4],[6,7,2,8]]
    P.v("v_lshlrev_b32",z,2,g)
    P.v("v_add_u32",wa[0],5*192,x)
    for k in (1,2):
        P.s("s_mov_b32",sT0,nib(taps[k])); P.v("v_bfe_u32",y,sT0,z,4); P.v("v_mul_u32_u24",y,192,y); P.v("v_add_u32",wa[k],x,y)
    P.v("v_and_b32",x,3,t); P.v("v_mul_u32_u24",vIDX,0x5555,x)
    P.v("v_lshrrev_b32",x,2,t); P.v("v_lshlrev_b32",vXI,2,x); P.v("v_lshl_add_u32",x,x,4,t); P.v("v_lshlrev_b32",vBP,2,x)
    P.v("v_mov_b32",vK2,f2u(1e-5/c_scale))
    for i in range(4): P.v("v_mov_b32",TONES[i],0x3f803f80)
    P.v("v_add_u32",vLO,R2,l16)
    P.s("s_mov_b64",S(88,2),1); sy_init(tSY,x)
    P.v("v_and_b32",x,1,g); P.v("v_lshlrev_b32",x,5,x); P.v("v_lshrrev_b32",y,1,g)
    if is3:
        P.v("v_lshrrev_b32",z,2,t); P.v("v_min_u32",z,2,z); P.v("v_mul_u32_u24",z,132*16,z); P.v("v_add_u32",x,x,z)
        if OPT.get("zdup",1):
            smov64(sTAB,lanemask(lambda l:(l&15) in (0,4,8))); P.v("v_mov_b32",z,0x00f00000); P.v("v_cndmask_b32",x,z,x,sTAB)
        P.v("v_mul_u32_u24",z,13*16,y); P.v("v_add_u32",vA1,x,z); P.v("v_mul_u32_u24",z,13*6*16,y); P.v("v_add_u32",vA2,x,z)
        P.v("v_add_u32",vLW,R1,l16)
        stT=(1,2)
    else:
        for k,(dst,tab) in enumerate(((sTAB,YT),(sTAB2,XT))):
            for h in range(2):
                vals=[(tab[T]>>(32*h))&0xffffffff for T in range(3)]
                P.s("s_mov_b32",dst[h],vals[0]); P.s("s_cmp_eq_u32",sI,1); P.s("s_cselect_b32",dst[h],vals[1],dst[h])
                P.s("s_cmp_eq_u32",sI,2); P.s("s_cselect_b32",dst[h],vals[2],dst[h])
        tok_extract(py,px,sh)
        P.v("v_mul_u32_u24",z,9,py); P.v("v_add_u32",z,z,px); P.v("v_mul_u32_u24",z,13*16,z); P.v("v_add_u32",x,x,z)
        P.v("v_mul_u32_u24",z,13*16,y); P.v("v_add_u32",vA1,x,z); P.v("v_mul_u32_u24",z,13*18*16,y); P.v("v_add_u32",vA2,x,z)
        P.s("s_mul_i32",sT0,sI,3072); P.s("s_add_u32",sT0,sT0,R1); P.v("v_add_u32",vLW,sT0,l16)
        P.s("s_mul_i32",sT0,sI,1024); P.s("s_add_u32",sT0,sT0,R1); P.v("v_add_u32",vLX,sT0,l16)
        stT=(0,1)
    t_init_state(is3)
    P.v("v_lshlrev_b32",u,4,g)
    if not is3:
        P.s("s_lshl_b32",sT0,sI,6); P.v("v_add_u32",u,sT0,u)
    for k,T in enumerate(stT):
        smov64(sTAB,YT[T]); smov64(sTAB2,XT[T]); tok_extract(py,px,sh)
        P.v("v_mul_u32_u24",x,ROWB,py); P.v("v_mul_u32_u24",y,192,px); P.v("v_add3_u32",vST[k],x,y,u)
    if not is3:
        P.v("v_add_u32",x,XTOK[0]*ROWB+XTOK[1]*192,u); P.v("v_or_b32",y,INV,x)
        smov64(sTAB,lanemask(lambda l:(l&15) in (0,4,8)))
        P.v("v_cndmask_b32",vXSB,y,x,sTAB)
    P.v("v_and_b32",x,1,t); P.v("v_lshlrev_b32",x,4,x); P.v("v_mov_b32",y,0x3f80); P.v("v_lshlrev_b32",y,x,y)
    for e in range(2):
        for k in range(4):
            smov64(sTAB,lanemask(lambda l:((l>>4)&1)==e and (l>>5)==((l&15)>>3) and ((l&7)>>1)==k))
            P.v("v_cndmask_b32",PERM(e)[k],0,y,sTAB)
    r=V(243); c_=V(244)
    P.v("v_lshrrev_b32",r,2,t); P.v("v_and_b32",c_,3,t); P.v("v_lshlrev_b32",c_,4,c_)
    if is3: P.v("v_add_u32",c_,WOSTG,c_)
    else:
        P.s("s_lshl_b32",sT0,sI,6); P.s("s_add_u32",sT0,sT0,WOSTG); P.v("v_add_u32",c_,sT0,c_)
    P.v("v_lshl_add_u32",z,g,2,r); P.v("v_mul_u32_u24",z,192,z); P.v("v_add_u32",WO(0,0,0)[0],z,c_)
    P.v("v_lshrrev_b32",z,1,r); P.v("v_mul_u32_u24",z,24,z); P.v("v_and_b32",u,1,r); P.v("v_lshl_add_u32",u,g,1,u); P.v("v_add3_u32",z,z,u,16)
    P.v("v_mul_u32_u24",z,192,z); P.v("v_add_u32",WO(0,0,0)[1],z,c_)
    if OPT.get("x1",0)==2: n1=t_start_dma(is3,1)
    for k in range(4): smov64(MK[k],lanemask(lambda l:((l>>4)&1)==((l&15)>>3) and ((l&7)>>1)==k))
    for k in range(4): smov64(MK[4+k],lanemask(lambda l:((l&15)>>2)==k))
    smov64(sTAB2,lanemask(lambda l:l<32))
    P.flush(False)
    if OPT.get("fine"): stamp()
    P.waitv(n0+n1)
    if OPT.get("fine"): stamp()
    for c in range(6):
        for k in range(3): P.dsr("ds_read_u16",CW(c,k)[3],wa[k],16*CH0[c])
    for c in range(6):
        w=CW(c,0)[3]
        P.v("v_lshlrev_b32",z,x,w); P.v("v_cndmask_b32",z,z,y,sTAB2)
        for k in range(4): P.v("v_cndmask_b32",CW(c,0)[k],0,z,MK[k])
        for kk in (1,2):
            for k in range(4): P.v("v_cndmask_b32",CW(c,kk)[k],0,CW(c,kk)[3],MK[4+k])
    for r in range(4): smov64(MK[r],lanemask(lambda l:(l&3)==r))
    P.flush(False)
    if OPT.get("fine"): stamp()
    if OPT.get("belate"): barrier("BE")
    P.waitv(n1)
    spin_sync(4,x,y,"T3" if is3 else "Ti")
    if OPT.get("fine"): stamp()

def t_wo_reads(is3):
    a1=vTT; a2=vT
    P.v("v_mov_b32",a1,WO(0,0,0)[0]); P.v("v_mov_b32",a2,WO(0,0,0)[1])
    for j in range(3 if is3 else 1):
        for e in range(2):
            for p in range(3):
                for hh in range(2):
                    if p<2: P.dsr("ds_read_b64_tr_b16",WO(j,e,p)[2*hh:2*hh+2],a1,24*(2*p+hh)*192+8*e+64*j)
                    else: P.dsr("ds_read_b64_tr_b16",WO(j,e,p)[2*hh:2*hh+2],a2,48*hh*192+8*e+64*j)
    P.flush(False); P.waitl0()

def ti_pools():
    return Pool([V(100,4),V(104,4)]), Pool([V(108+8*i,8) for i in range(4)])
TI_REGS=[([V(228+4*p,4) for p in range(3)],V(252,4),[V(144,4),V(100,4)]),
         ([V(240+4*p,4) for p in range(3)],V(140,4),[V(104,4),V(108,4)]),
         ([V(112+4*p,4) for p in range(3)],V(124,4),[V(128,4),V(132,4)])]
def t_chkA(dep=None):
    P.s("s_add_u32",sTA,sTA,0x01010101)
    sy_poll(tSY,tPL,CA,deps=(dep,) if dep else ()); sy_check(tSY,tPL,CA,sTA,"OKA")
def t_begin(first=False):
    if not first:
        P.s("s_add_u32",sTT,sTT,4*FLAG)
        sy_wait(tSY,tPL,CT,sTT)
def t_end(vm):
    if vm is not None: P.waitv(vm)
    sy_signal(tSY,CT); P.flush(False)
    if OPT["stamps"]==1: stamp()
def ti_units(s,units,dep=None):
    slot=(s+2)%3
    for k,T in enumerate(units):
        ob,xb,acc=TI_REGS[k]
        if T=="x":
            for p in range(3): P.dsr("ds_read_b128",ob[p],vLO,OX+1024*p,mem={"OKA"})
            P.dsr("ds_read_b128",xb,vLXX,0)
            P.v("v_add_u32",vLXX,sDX,vLXX); P.s("s_sub_i32",sDX,0,sDX)
            P.s("s_add_u32",sL3,sK,5); P.s("s_lshl_b32",sL3,sL3,2); P.v("v_add_u32",vXS,sL3,vXI)
            P.bperm(vXS,vXS,vTAB)
            P.v("v_and_b32",vXS,0x7fffffc0,vXS); P.v("v_add_u32",vXS,vXS,vXSB)
        else:
            for p in range(3): P.dsr("ds_read_b128",ob[p],vLO,OS[slot]+3072*T+1024*p,mem={"OKA"})
            P.dsr("ds_read_b128",xb,vLX,XBS[slot]+3072*T)
    for k,T in enumerate(units):
        ob,xb,acc=TI_REGS[k]
        if T=="x":
            P.s("s_mov_b32",SRDO[2],XBYTES)
            t_unit(0,ob,xb,acc,vXS,0,0,dep)
            t_store_setup()
        else:
            if k==0: t_store_setup()
            t_unit(0,ob,xb,acc,vST[T],sOFFS,0,dep)
    return len(units)*(2 if OPT.get("st2") else 1)
TI_UNITS=OPT.get("tiu",[["x",0],[0,1],[0,1]])
def t_prio(start,n):
    if n is None: return
    seg=P.out[start:]; idx=[k for k,i in enumerate(seg) if i.kind in MF]
    if len(idx)<=n: return
    seg.insert(idx[n]+1,Ins(f"s_setprio {OPT['prioT']}","other"))
    seg.insert(idx[0],Ins("s_setprio 0","other"))
    P.out[start:]=seg
def ti_step(s,conv=True,units=True,dma=True,xbw=True):
    nd=0; ns=0; st0=len(P.out)
    if dma: t_dma_prep()
    if dma: nd+=t_dma_rows(False,(s+1)%3,deps=(None,None))
    if xbw: t_xbw(vLW,XBS[(s+1)%3])
    if OPT.get("tptest") and conv and units:
        if dma and s==2: nd+=t_dma_xx(None)
        t_chkA(None)
        global TI_REGS
        sv=TI_REGS
        TI_REGS=[([V(228+4*p,4) for p in range(3)],V(252,4),[V(144,4),V(196,4)]),([V(240+4*p,4) for p in range(3)],V(140,4),[V(200,4),V(144,4)])]
        ns+=ti_units(s,TI_UNITS[s],None); TI_REGS=sv
        t_ln(vLW,HS[(s+2)%3])
        p4,p8=ti_pools(); t_conv(XSL[(s+2)%3],117,p4,p8)
    else:
        if conv:
            p4,p8=ti_pools()
            t_conv(XSL[(s+2)%3],117,p4,p8)
        if dma and s==2: nd+=t_dma_xx("GAP" if conv else None)
        if units:
            t_chkA(f"CV{OPT.get('cvpoll',4)}" if conv else None)
            ns+=ti_units(s,TI_UNITS[s],"LNGO" if (conv and OPT.get("lngo",1)) else None)
        if conv: t_ln(vLW,HS[(s+2)%3])
    if OPT.get("noT"): P.cur=[i for i in P.cur if i.kind in OPT["noT"]]; P.last_len=0; nd=0; ns=0
    P.s("s_add_i32",sK,sK,1)
    P.excl=bool(TEXCL and conv and units); P.flush(True,mf_gap=OPT["gapT"]); P.excl=False
    if conv and units: t_prio(st0,OPT.get("lowN"))
    if conv and units: add_marks(st0,[nth(MF,0),nth(("smfmac",),-1),nth(("trans",),0),nth(MF,-1),nth(("dsw",),-1)],s)
    return nd,ns

def t3_tile(T,slot,regs,dep=None):
    ob,xbs,accs=regs
    for p in range(3): P.dsr("ds_read_b128",ob[p],vLO,OS[slot]+3072*T+1024*p,mem={"OKA"})
    for j in range(3): P.dsr("ds_read_b128",xbs[j],vLW,XBS[slot]+3072*T+1024*j)
    for j in range(3): t_unit(j,ob,xbs[j],accs.get(),vST[T-1],sOFFS,64*j,dep)
    return 3*(2 if OPT.get("st2") else 1)
def t3_regs():
    ac=Pool([[V(184,4),V(188,4)],[V(192,4),V(196,4)],[V(200,4),V(252,4)]])
    return ([V(160+4*p,4) for p in range(3)],[V(172+4*j,4) for j in range(3)],ac),([V(228+4*p,4) for p in range(3)],[V(240+4*j,4) for j in range(3)],ac)
def t3_convx_a():
    p4=Pool([V(252,4)]); p8=Pool([V(228+8*i,8) for i in range(3)])
    t_conv(XX,39,p4,p8)
    t_xbw(vLXX,0)
    P.v("v_add_u32",vLXX,sDX,vLXX); P.s("s_sub_i32",sDX,0,sDX)
T3_TILES=OPT.get("t3t",[[1,2],[2],[2]])
def t3_step(s,conv=True,units=True,dma=True,xbw=True):
    nd=0; ns=0; st0=len(P.out)
    if dma: t_dma_prep(); nd+=t_dma_rows(True,(s+1)%3)
    slot=(s+2)%3
    if units: t_store_setup()
    A,B=t3_regs()
    if s==1 and conv:
        t3_convx_a()
        ac=Pool([[V(184,4),V(188,4)],[V(192,4),V(196,4)],[V(200,4),V(252,4)]])
        if units: t_chkA("CV4"); ns+=t3_tile(2,slot,(B[0],B[1],ac),"LNGO" if OPT.get("lngo",1) else None)
        t_ln(vLW,HX)
    elif units:
        t_chkA("VM" if dma else None)
        for T,R in zip(T3_TILES[s],(A,B)): ns+=t3_tile(T,slot,R)
    if OPT.get("noT"): P.cur=[i for i in P.cur if i.kind in OPT["noT"]]; P.last_len=0; nd=0; ns=0
    P.s("s_add_i32",sK,sK,1)
    P.excl=bool(TEXCL and conv and units); P.flush(True,mf_gap=OPT["gapT"]); P.excl=False
    if conv and units: t_prio(st0,OPT.get("lowN3"))
    if conv and units: add_marks(st0,[nth(MF,0),nth(("dma",),-1),nth(MF,11),nth(MF,-1),nth(("vst",),-1)],s)
    return nd,ns

P.max_lds=OPT.get("maxldsT",12); P.LDS_LAT=OPT.get("latT",OPT["lat"]); TEXCL=OPT.get("excl",0)
P.label("L_T")
P.s("s_cmp_eq_u32",sWV,7); P.flush(False); P.branch("s_cbranch_scc1","L_T3")
for is3 in (False,True):
    nm="T3" if is3 else "Ti"
    if is3: P.label("L_T3")
    vSTAMP[0]=V(213); stamp()
    if OPT["prioT"]: P.raw(f"s_setprio {OPT['prioT']}")
    t_prologue(is3)
    if OPT.get("fast0",1):
        ml=P.max_lds; P.max_lds=15
        nx=2 if OPT.get("x1",0) else 1
        P.s("s_mov_b32",sK,nx-4); t_dma_prep()
        p4=Pool([V(228+4*i,4) for i in range(6)]); p8=Pool([V(80+8*i,8) for i in range(8)])
        def mid0():
            df=OPT["dmafirst"]; OPT["dmafirst"]=0
            t_dma_rows(is3,nx,deps=("GAP","GAP","GAP")); OPT["dmafirst"]=df
        MID.append(mid0)
        if is3:
            t_conv(XX,39,p4,p8); t_xbw(vLXX,0); P.v("v_add_u32",vLXX,sDX,vLXX); P.s("s_sub_i32",sDX,0,sDX); t_ln(vLW,HX)
        else:
            t_conv(XSL[0],117,p4,p8); t_ln(vLW,HS[0])
        P.flush(True); P.max_lds=ml
        if nx==1: t_start_dma(is3,2); P.flush(False)
        P.waitl0()
        P.branch("s_branch",f"L_{nm}join")
    P.label(f"L_{nm}start")
    if not OPT.get("x1",0): t_start_dma(is3,1); P.flush(False)
    n2=t_start_dma(is3,2,late=not OPT.get("x2early"))
    if OPT.get("x2early"): P.flush(False)
    def mid():
        if LATE: t_late()
    MID.append(mid)
    if is3: t3_convx_a(); t_ln(vLW,HX)
    else:
        p4,p8=ti_pools(); t_conv(XSL[0],117,p4,p8); t_ln(vLW,HS[0])
    P.flush(True); P.waitl0()
    P.label(f"L_{nm}join")
    P.s("s_mov_b32",sK,-1); P.s("s_mov_b32",sG,0); P.flush(False)
    barrier("B1",n2)
    step=t3_step if is3 else ti_step
    def wo_dma():
        P.v("v_subrev_u32",vTT,R2,vLO)
        P.s("s_mov_b32",SRDW[0],S(22)); P.s("s_mov_b32",SRDW[1],S(23))
        P.s("s_cmp_eq_u32",sMODE,0); P.s("s_cselect_b32",SRDW[2],18432,0)
        for n in range(18):
            P.s("s_mov_b32",M0,WOSTG+1024*n); P.s("s_movk_i32",sT2,1024*n); P.dma(vTT,SRDW,sT2)
        P.flush(False)
    def wo_rd():
        P.s("s_cmp_lg_u32",sMODE,0); P.flush(False); P.branch("s_cbranch_scc1",f"L_{nm}nowo")
        t_wo_reads(is3)
        P.label(f"L_{nm}nowo")
    P.s("s_mov_b32",sTT,0); P.s("s_mov_b32",sTA,0x7f7f7f80); P.flush(False)
    if is3: wo_dma()
    nd,ns=step(2,units=False); t_end(nd)
    t_begin()
    if OPT["stamps"]==3: stamp()
    wo_rd()
    nd,ns=step(0,units=False); t_end(nd)
    P.label(f"L_{nm}loop")
    t_begin(); nd,ns1=step(1); t_end(0+nd+ns1)
    t_begin(); nd,ns2=step(2); t_end(ns1+nd+ns2)
    t_begin(); nd,ns0=step(0); t_end(ns2+nd+ns0)
    P.s("s_add_u32",sG,sG,1); P.s("s_cmp_lt_u32",sG,6); P.flush(False); P.branch("s_cbranch_scc1",f"L_{nm}loop")
    t_begin(); step(1,conv=False,dma=False); t_end(None)
    t_begin(); step(2,conv=False,dma=False,xbw=False); t_end(None)
    t_chkA()
    if is3:
        t_store_setup(); A,B=t3_regs(); t3_tile(2,2,A)
    else: ti_units(0,["x",0,1])
    P.v("v_mov_b32",vTT,FLAG)
    P.flush(True)
    P.barrier()
    P.dsr("ds_read_b32",vT,vTT,0); P.v("v_cmp_ne_u32",VCC,0,vT); P.s("s_cmp_lg_u32",sMODE,0); P.flush(False)
    P.branch("s_cbranch_scc1",f"L_{nm}end")
    P.branch("s_cbranch_vccz",f"L_{nm}end")
    st=OPT["stamps"]; OPT["stamps"]=0
    P.s("s_mov_b32",sMODE,1); P.flush(False); P.waitv(0)
    t_start_dma(is3,0)
    if OPT.get("x1",0): t_start_dma(is3,1)
    t_init_state(is3); P.flush(False)
    P.barrier(0)
    P.branch("s_branch",f"L_{nm}start")
    OPT["stamps"]=st
    P.label(f"L_{nm}end")
    stamp_end()
    P.raw("s_endpgm"); P.flush(False)
    sy_slow()

P.label("L_end")
P.raw("s_endpgm"); P.flush(False)
P.label("L_hotend")
emit_safe()

body=P.text()
hdr=open("standalone__window_attn_davit__vision.s.ref").read().split("\n")
lines=[l for l in hdr if l.startswith(";") and "@launch" not in l and not l.startswith("; Override") and not l.startswith("; grid=ceil")]
txt="\n".join(lines)+f"\n; @launch grid=(256,1,1) block=(512,1,1) lds={LDS_TOTAL}\n"
txt+=f""".amdgcn_target "amdgcn-amd-amdhsa--gfx950"
.text
.globl {KN}
.p2align 8
.type {KN},@function
{body}.section .rodata,"a"
.p2align 6
.amdhsa_kernel {KN}
  .amdhsa_next_free_vgpr 256
  .amdhsa_next_free_sgpr 96
  .amdhsa_accum_offset 256
  .amdhsa_group_segment_fixed_size 0
  .amdhsa_kernarg_size 56
  .amdhsa_user_sgpr_count 2
  .amdhsa_user_sgpr_kernarg_segment_ptr 1
  .amdhsa_system_sgpr_workgroup_id_x 1
.end_amdhsa_kernel
"""
open(OUT,"w").write(txt)
import collections
cnt=collections.Counter(i.kind for i in P.final)
print("instr kinds:",dict(cnt))
for i in P.final:
    if i.tag=="comment": print(i.text)
```

```python
import re

class R:
    __slots__=("k","i","n")
    def __init__(s,k,i,n=1): s.k=k; s.i=i; s.n=n
    def __str__(s):
        return f"{s.k}{s.i}" if s.n==1 else f"{s.k}[{s.i}:{s.i+s.n-1}]"
    def regs(s): return {f"{s.k}{s.i+j}" for j in range(s.n)}
    def __getitem__(s,j):
        if isinstance(j,slice):
            a=j.start or 0; b=j.stop if j.stop is not None else s.n
            assert 0<=a<b<=s.n
            return R(s.k,s.i+a,b-a)
        assert 0<=j<s.n
        return R(s.k,s.i+j,1)
def V(i,n=1):
    assert 0<=i and i+n<=256, (i,n)
    if n>1: assert i%2==0, ("unaligned tuple",i,n)
    return R("v",i,n)
def S(i,n=1): return R("s",i,n)
class Sp:
    def __init__(s,name): s.name=name
    def __str__(s): return s.name
    def regs(s): return {s.name}
VCC=Sp("vcc"); EXEC=Sp("exec"); M0=Sp("m0")
class Neg:
    def __init__(s,r): s.r=r
    def __str__(s): return "-"+str(s.r)
    def regs(s): return s.r.regs()

def regs_of(x):
    return x.regs() if hasattr(x,"regs") else set()
def fmt(x):
    if isinstance(x,int):
        if -16<=x<=64: return str(x)
        return hex(x & 0xffffffff)
    return str(x)

class Ins:
    __slots__=("text","kind","rd","wr","srcc","cost","states","prio","idx","sub","tag","dtuple")
    def __init__(s,text,kind,rd=(),wr=(),srcc=(),cost=4,states=1,sub=None,tag=None):
        s.text=text; s.kind=kind; s.rd=set(rd); s.wr=set(wr); s.srcc=set(srcc)
        s.cost=cost; s.states=states; s.sub=sub; s.tag=tag; s.prio=0

VALU_KINDS=("valu","trans","dpp","perm","rdlane")
MF=("mfma","smfmac")
TRANS_OPS=("v_exp_f32","v_rcp_f32","v_rsq_f32","v_log_f32","v_sqrt_f32","v_rcp_iflag_f32")

class Prog:
    def __init__(s):
        s.cur=[]
        s.out=[]
        s.LDS_LAT=128
        s.order_prio=True
        s.max_lds=12
        s.excl=False
        s.pack2=False
        s.excl_look=0
        s.slack=0
        s.pref_trans=True
        s.wait_merge=20
    def add(s,i): s.cur.append(i); return i
    def v(s,op,dst,*src,mod="",extra_rd=(),extra_wr=()):
        kind="trans" if op in TRANS_OPS else "valu"
        cost=8 if kind=="trans" else 4
        rd=set().union(*[regs_of(x) for x in src]) if src else set()
        wr=set(regs_of(dst))
        if op in("v_fmac_f32",): rd|=wr
        if "dpp" in op: kind="dpp"
        if op.startswith("v_permlane"):
            kind="perm"; cost=8; rd|=wr; wr|=rd
        if op in("v_readfirstlane_b32","v_readlane_b32"): kind="rdlane"
        rd|=set(extra_rd); wr|=set(extra_wr)
        t=f"{op} {fmt(dst)}"+"".join(", "+fmt(x) for x in src)+((" "+mod) if mod else "")
        return s.add(Ins(t,kind,rd,wr,cost=cost))
    def s(s,op,dst,*src,scc_w=None,scc_r=None):
        rd=set().union(*[regs_of(x) for x in src]) if src else set()
        wr=set(regs_of(dst))
        if op.startswith("s_cmp"):
            rd|=wr; wr={"scc"}
        else:
            if scc_w is None: scc_w = not (op.startswith("s_mov") or op.startswith("s_cselect") or op.startswith("s_mul") or op.startswith("s_movk"))
            if scc_w: wr.add("scc")
        if op.startswith("s_cselect") or op in("s_addc_u32","s_subb_u32"): rd.add("scc")
        t=f"{op} {fmt(dst)}"+"".join(", "+fmt(x) for x in src)
        return s.add(Ins(t,"salu",rd,wr))
    def mfma(s,d,a,b,c):
        rd=regs_of(a)|regs_of(b)|regs_of(c)
        i=Ins(f"v_mfma_f32_16x16x32_bf16 {d}, {a}, {b}, {fmt(c)}","mfma",rd,regs_of(d),srcc=regs_of(c),cost=8)
        return s.add(i)
    def smfmac(s,d,a,b,idx):
        rd=regs_of(a)|regs_of(b)|regs_of(d)|regs_of(idx)
        i=Ins(f"v_smfmac_f32_16x16x64_bf16 {d}, {a}, {b}, {idx}","smfmac",rd,regs_of(d),srcc=regs_of(d),cost=12)
        return s.add(i)
    def cvt(s,d,x,y): return s.v("v_cvt_pk_bf16_f32",d,x,y)
    def dsr(s,op,d,addr,off=0,mem=()):
        assert 0<=off<65536,off
        return s.add(Ins(f"{op} {d}, {addr}"+(f" offset:{off}" if off else ""),"dsr",regs_of(addr)|set(mem),regs_of(d),cost=4))
    def dsw(s,op,addr,src,off=0,mem=()):
        assert 0<=off<65536,off
        return s.add(Ins(f"{op} {addr}, {src}"+(f" offset:{off}" if off else ""),"dsw",regs_of(addr)|regs_of(src),set(mem),cost=4))
    def bperm(s,d,addr,src):
        return s.add(Ins(f"ds_bpermute_b32 {d}, {addr}, {src}","dsr",regs_of(addr)|regs_of(src),regs_of(d),cost=4))
    def dma(s,voff,srd,soff,off=0,mod=""):
        return s.add(Ins(f"buffer_load_dwordx4 {voff}, {srd}, {fmt(soff)} offen"+(f" offset:{off}" if off else "")+((" "+mod) if mod else "")+" lds","dma",
                         regs_of(voff)|regs_of(srd)|regs_of(soff)|{"m0","VM"},{"VM"},cost=4))
    def vst(s,op,data,voff,srd,soff,off=0,mod=""):
        return s.add(Ins(f"{op} {data}, {voff}, {srd}, {fmt(soff)} offen"+(f" offset:{off}" if off else "")+((" "+mod) if mod else ""),"vst",
                         regs_of(data)|regs_of(voff)|regs_of(srd)|regs_of(soff)|{"VM"},{"VM"},cost=4,tag=data))
    def vld(s,op,d,voff,srd,soff,off=0):
        return s.add(Ins(f"{op} {d}, {voff}, {srd}, {fmt(soff)} offen"+(f" offset:{off}" if off else ""),"vld",
                         regs_of(voff)|regs_of(srd)|regs_of(soff)|{"VM"},regs_of(d)|{"VM"},cost=4))
    def raw(s,text,kind="other",rd=(),wr=(),states=1):
        return s.add(Ins(text,kind,rd,wr,states=states))
    def bundle(s,fn):
        save=s.cur; s.cur=[]
        fn()
        sub=s.cur; s.cur=save
        rd=set(); wr=set()
        for i in sub:
            rd|=(i.rd-wr); wr|=i.wr
        rd.discard("exec"); wr.discard("exec")
        b=Ins("<bundle>","bundle",rd,wr,cost=sum(i.cost for i in sub),sub=sub)
        return s.add(b)
    def flush(s,sched=True,mf_gap=16,window=None):
        ins=s.cur; s.cur=[]
        if sched and len(ins)>1: ins=s.schedule(ins,mf_gap,window)
        for i in ins:
            if i.kind=="bundle": s.out.extend(i.sub)
            else: s.out.append(i)
    def label(s,name):
        assert not s.cur
        s.out.append(Ins(name+":","label",states=0))
    def branch(s,op,target):
        assert not s.cur
        rd={"scc"} if "scc" in op else ({"vcc"} if "vcc" in op else set())
        s.out.append(Ins(f"{op} {target}","branch",rd))
    def barrier(s,vm=None):
        assert not s.cur
        s.out.append(Ins("s_waitcnt lgkmcnt(0)"+(f" vmcnt({vm})" if vm is not None else ""),"wait0"))
        s.out.append(Ins("s_barrier","other"))
    def waitv(s,n):
        assert not s.cur
        s.out.append(Ins(f"s_waitcnt vmcnt({n})","other"))
    def waitl0(s):
        assert not s.cur
        s.out.append(Ins(f"s_waitcnt lgkmcnt(0)","wait0"))
    def comment(s,t):
        assert not s.cur
        s.out.append(Ins("; "+t,"label",states=0,tag="comment"))

    def lat(s,p,c,reg,typ):
        pk=p.kind
        if reg.isupper(): return p.cost
        if typ=="raw":
            if pk=="dsr": return s.LDS_LAT
            if pk in MF:
                if c.kind in MF and reg in c.srcc and c.srcc=={r for r in p.wr if r[0]=="v"}: return 16
                if c.kind in MF and reg in c.srcc: return 28
                return 36
            if pk in VALU_KINDS or pk=="bundle":
                if c.kind in MF: return p.cost+8
                if c.kind in("dpp","perm"): return p.cost+8
                if pk=="trans": return p.cost+4
                if reg[0]=="s" or reg=="vcc": return p.cost+20
                return p.cost
            return p.cost
        if typ=="war":
            if pk in MF and reg in p.srcc and c.kind not in MF: return 16
            if pk=="vst": return 12
            return p.cost
        if typ=="waw":
            if pk in MF and c.kind not in MF: return 36
            if pk=="dsr": return s.LDS_LAT
            return p.cost
    def schedule(s,ins,mf_gap,window):
        n=len(ins)
        preds=[dict() for _ in range(n)]
        lastw={}; readers={}
        for k,i in enumerate(ins):
            for r in i.rd:
                if r in lastw:
                    j=lastw[r]; preds[k][j]=max(preds[k].get(j,0),s.lat(ins[j],i,r,"raw"))
            for r in i.wr:
                if r in lastw:
                    j=lastw[r]; preds[k][j]=max(preds[k].get(j,0),s.lat(ins[j],i,r,"waw"))
                for j in readers.get(r,()):
                    if j!=k: preds[k][j]=max(preds[k].get(j,0),s.lat(ins[j],i,r,"war"))
            for r in i.rd: readers.setdefault(r,[]).append(k)
            for r in i.wr: lastw[r]=k; readers[r]=[]
        succs=[[] for _ in range(n)]
        for k in range(n):
            for j,l in preds[k].items(): succs[j].append((k,l))
        cp=[0]*n
        for k in range(n-1,-1,-1):
            cp[k]=ins[k].cost+max([l+cp[c] for c,l in succs[k]],default=0)
        npred=[len(p) for p in preds]
        ready_t=[0]*n
        cand=[k for k in range(n) if npred[k]==0]
        order=[]; lds_out=[]
        tV=0; tD=0; tS=0; tm=0; nmf=0
        def cls(i):
            k=i.kind
            if k in MF: return "M"
            if k in VALU_KINDS: return "V"
            if k in("dsr","dsw","dma","vst","vld"): return "D"
            if k=="bundle": return "B"
            return "S"
        def after(i,t):
            c=cls(i)
            if c=="M": return (t+i.cost,t+4,t+4)
            if c=="V": return (t+i.cost,t+i.cost+4,t+i.cost)
            if c=="B": return (t+i.cost,t+i.cost+4,t+i.cost)
            if i.kind=="dsr": return (max(tV,t+8),t+4,t+8)
            if i.kind=="dsw":
                w=24 if "b128" in i.text else (16 if "b64" in i.text else 12)
                return (max(tV,t+w),t+w,t+w)
            if c=="D": return (max(tV,t+16),t+16,t+16)
            return (max(tV,t+4),max(tD,t+4),t+4)
        def it(k):
            i=ins[k]; c=cls(i); r=ready_t[k]
            if c=="M": return max(r,tV,tm)
            if c=="V": return max(r,tV)
            if c=="B": return max(r,tV if i.sub[0].kind!="salu" else tS)
            if c=="D":
                r=max(r,tD)
                if i.kind in("dsr","dsw"):
                    lo=[x for x in lds_out if x>r]
                    if len(lo)>=s.max_lds: r=max(r,sorted(lo)[len(lo)-s.max_lds])
                return r
            return max(r,tS)
        while cand:
            now=min(tV,tD,tS)
            ms=[k for k in cand if ins[k].kind in MF]
            os_=[k for k in cand if ins[k].kind not in MF]
            pick=None
            mk=None
            if ms:
                tbest=min(it(k) for k in ms)
                mk=min([k for k in ms if it(k)<=tbest],key=lambda k:k-ins[k].prio)
                tM=it(mk)
            if s.excl:
                vs=[k for k in os_ if cls(ins[k])=="V"]
                ns_=[k for k in os_ if cls(ins[k])!="V"]
                shadow=[k for k in vs if it(k)+ins[k].cost<=tm and it(k)<=tV]
                free_=[k for k in ns_ if cls(ins[k]) in("S","D") and after(ins[k],it(k))[0]<=tV and it(k)<=max(tS,tD)]
                nowr=[k for k in ns_ if it(k)<=max(tV,tD,tS,tm)+s.excl_look]
                if free_: pick=min(free_,key=lambda k:(0 if ins[k].kind=="dsr" else 1,k))
                elif shadow: pick=min(shadow,key=lambda k:k-ins[k].prio)
                elif nowr: pick=min(nowr,key=lambda k:(0 if ins[k].kind in("dsr","dsw") else 1,k))
                elif mk is not None: pick=mk
                elif ns_ and (not vs or min(it(k) for k in ns_)<=min(it(k) for k in vs)): pick=min(ns_,key=lambda k:(it(k),k))
                else: pick=min(vs,key=lambda k:(max(it(k),tV),k-ins[k].prio))
            elif os_:
                if mk is not None and tM<=max(tm,tV)+s.slack:
                    fit=[k for k in os_ if after(ins[k],it(k))[0]<=tM]
                    if s.pack2:
                        if order and order[-1].kind in MF:
                            fit+=[k for k in os_ if ins[k].kind=="dsw" and k not in fit and it(k)<=tD and after(ins[k],it(k))[0]<=tM+4]
                        rem=tM-tV
                        pl=[k for k in fit if cls(ins[k])=="V" and ins[k].cost==4 and it(k)<=tV]
                        tr=[k for k in fit if cls(ins[k])=="V" and ins[k].cost==8 and it(k)<=tV]
                        if rem==8 and len(pl)==1 and tr:
                            k1=pl[0]
                            nxt=[c for c,l in succs[k1] if npred[c]==1 and cls(ins[c])=="V" and ins[c].cost==4 and max(ready_t[c],tV+l)<=tV+4]
                            soon=[k for k in os_ if k!=k1 and cls(ins[k])=="V" and ins[k].cost==4 and it(k)<=tV+4]
                            if not nxt and not soon: fit=[k for k in fit if k!=k1]
                    if fit:
                        def key(k):
                            i=ins[k]; c=cls(i); t0=it(k)
                            late = 0 if t0<=(tS if c in("S","D","B") else tV) else 1
                            rank = 0 if i.kind in("dsr",) else (1 if c in("S","D") else 2)
                            return (late,rank,k-i.prio)
                        pick=min(fit,key=key)
                    else: pick=mk
                else:
                    tb=min(it(k) for k in os_)
                    if mk is not None and tM<=tb: pick=mk
                    else:
                        lim=max(tb,tV)
                        rdy=[k for k in os_ if it(k)<=lim]
                        pick=min(rdy,key=lambda k:(0 if ins[k].kind=="dsr" else 1,k-ins[k].prio))
            else: pick=mk
            k=pick; i=ins[k]; t=it(k)
            order.append(i); cand.remove(k)
            tV,tD,tS=after(i,t)
            if i.kind in MF:
                if isinstance(mf_gap,(list,tuple)): tm=t+mf_gap[nmf%len(mf_gap)]
                else: tm=t+mf_gap
                nmf+=1
            if i.kind in("dsr","dsw"): lds_out.append(t+s.LDS_LAT)
            for c,l in succs[k]:
                ready_t[c]=max(ready_t[c],t+l); npred[c]-=1
                if npred[c]==0: cand.append(c)
        assert len(order)==n
        s.last_len=max(tV,tD,tS)
        return order

    def need_states(s,p,c):
        need=0
        pk=p.kind; ck=c.kind
        cv = ck in VALU_KINDS
        if pk in VALU_KINDS:
            vw={r for r in p.wr if r[0]=="v" and r!="vcc"}
            sw={r for r in p.wr if r[0]=="s" or r=="vcc"}-{"scc"}
            if vw&c.rd:
                if ck in MF: need=max(need,2)
                if ck in("dpp","perm"): need=max(need,2)
                if ck=="rdlane": need=max(need,1)
                if pk=="trans" and cv and ck!="trans": need=max(need,1)
                if pk=="trans" and not cv: need=max(need,1)
            if sw&c.rd:
                if cv: need=max(need,4 if ck=="rdlane" else 2)
                if ck in("dma","vst","vld"): need=max(need,5)
                if ck in("salu","branch"): need=max(need,5 if ck=="branch" else 2)
        if pk in MF:
            if ck in MF:
                if p.wr&c.srcc:
                    if c.srcc!={r for r in p.wr if r[0]=="v"}: need=max(need,6)
                if p.wr&(c.rd-c.srcc): need=max(need,8)
                if ck=="mfma" and False: pass
            else:
                if p.wr&(c.rd|c.wr): need=max(need,8)
                if cv and (p.srcc&c.wr): need=max(need,3)
        if pk=="salu" and "m0" in p.wr and ck=="dma": need=max(need,1)
        if pk=="vst" and p.tag is not None and p.tag.n>=3 and (p.tag.regs()&c.wr): need=max(need,2)
        return need
    def finalize(s):
        assert not s.cur
        res=[]
        hist=[]
        pend=[]
        def emit(i):
            res.append(i)
        def elapsed(seq,c):
            t=0; vfree=0; mlast=None
            for x in seq+[c]:
                isv = x is not None and (x.kind in VALU_KINDS or x.kind in MF)
                if isv: t=max(t,vfree)
                if x is not None and x.kind in MF and mlast is not None: t=max(t,mlast+16)
                if x is c: return t
                if isv: vfree=t+x.cost
                if x.kind in MF: mlast=t
                t+=4*x.states
        def dist_pad(c,allc=False):
            d=0; pad=0
            for idx in range(len(res)-1,-1,-1):
                p=res[idx]
                if p.kind=="label" and p.tag!="comment": break
                if d>=8: break
                if allc:
                    nd = 8 if p.kind in MF else (5 if p.kind in VALU_KINDS and any(r[0]=="s" or r=="vcc" for r in p.wr) else (2 if p.kind in VALU_KINDS or p.kind=="vst" else (1 if p.kind=="salu" and "m0" in p.wr else 0)))
                else:
                    nd=s.need_states(p,c)
                if nd>d:
                    k=nd-d
                    if p.kind in MF:
                        seq=res[idx:]
                        k=0
                        while elapsed(seq+([Ins("","nop",states=k)] if k else []),c)<4*(nd+1): k+=1
                    pad=max(pad,k)
                d+=p.states
            return pad
        for i in s.out:
            if i.kind=="label":
                if i.tag!="comment":
                    pad=dist_pad(None,True)
                    if pad: emit(Ins(f"s_nop {pad-1}","nop",states=pad))
                    assert not any(d[0] for d in pend), ("lds reads outstanding at label",i.text)
                emit(i); continue
            if i.kind=="wait0":
                pend=[]; emit(i); continue
            touch=i.rd|i.wr
            last=-1
            for k,d in enumerate(pend):
                if d[0]&touch: last=k
            if last>=0:
                while last+1<len(pend) and len(res)-pend[last+1][1]>=s.wait_merge: last+=1
                nleft=len(pend)-1-last
                w=Ins(f"s_waitcnt lgkmcnt({nleft})","other")
                pos=len(res); j=len(res)-1; steps=0
                while j>=0 and steps<3 and res[j].kind in VALU_KINDS: j-=1; steps+=1
                if j>=0 and res[j].kind in MF and steps>0 and (j+1-pend[last][1])>=s.wait_merge//2: pos=j+1
                res.insert(pos,w)
                pend=pend[last+1:]
            if i.kind in("dsr","dsw") and len(pend)>=15:
                emit(Ins(f"s_waitcnt lgkmcnt(13)","other")); pend=pend[len(pend)-13:]
            if i.kind=="branch":
                pad=max(dist_pad(i), dist_pad(None,True)-1)
                assert not any(d[0] for d in pend), ("lds reads outstanding at branch",i.text)
            else:
                pad=dist_pad(i)
            if pad>0: emit(Ins(f"s_nop {pad-1}","nop",states=pad))
            emit(i)
            if i.kind=="dsr": pend.append(({r for r in i.wr if r[0]=="v"},len(res)))
            if i.kind=="dsw": pend.append((set(),len(res)))
        return res
    def text(s):
        res=s.finalize()
        lines=[]
        for i in res:
            lines.append(i.text if (i.kind=="label" or i.tag=="soft") else "    "+i.text)
        s.final=res
        return "\n".join(lines)+"\n"
```

```python
import sys, math, struct
from asmlib import *

OPT=dict(merge=0, pack2=1, sleep=2, sleep2=1, fast0=0, trprio=0, pref=0, map="lin", ldmod="nt", stmod="sc0 sc1", dmafirst=0, aprio=2, dump=None, prioA=0, prioT=1, force_slow=False, lat=96, thr=2.0**40, gapA=16, gapT=16, stamps=0)
for a in sys.argv[1:]:
    if "=" in a:
        k,v=a.split("=",1); OPT[k]=eval(v)
OUT=OPT.get("out","standalone__window_attn_davit__vision.s")
KN="standalone__window_attn_davit__vision_kernel"

def f2u(f): return struct.unpack("<I",struct.pack("<f",f))[0]
ROWB=511*192; BIAS=ROWB+192; XBYTES=50135232
NWIN=21; NWG=254 if OPT.get("map","band")=="band" else 256; INV=0x40000000
c_scale=(24**-0.5)*math.log2(math.e)
XS=17408; XSL=[0,XS,2*XS]; XX=3*XS; FLAG=XX+6272
R1=58560
HX=0; XBX0=3072; HS=[6144,24576,33792]; XBS=[15360,43008,52224]; XBX1=61440
R2=R1+64512
OS=[0,9216,18432]; OX=27648
WSTG=R1+33792; WOSTG=R2+18432; LDS_TOTAL=WOSTG+18432
assert WSTG+55296<=LDS_TOTAL
assert LDS_TOTAL<=163840 and WOSTG%16==0

XTOK=(2,4)
byres={}
for y in range(7):
    for x in range(7):
        if (y,x)==XTOK: continue
        byres.setdefault((9*y+x)%16,[]).append((y,x))
assert all(len(v)==3 for v in byres.values()) and len(byres)==16
G0=[0,1,2,3,12,13,14,15]; G1=[4,5,6,7,8,9,10,11]
TOK=[[None]*16 for _ in range(3)]
for T in range(3):
    ev=sorted([byres[r][T] for r in range(0,16,2)]); od=sorted([byres[r][T] for r in range(1,16,2)])
    for c,t in zip(G0,ev): TOK[T][c]=t
    for c,t in zip(G1,od): TOK[T][c]=t
def nib(vals): return sum((v&15)<<(4*i) for i,v in enumerate(vals))
YT=[nib([t[0] for t in TOK[T]]) for T in range(3)]
XT=[nib([t[1] for t in TOK[T]]) for T in range(3)]
def lanemask(f): return sum(1<<l for l in range(64) if f(l))

P=Prog(); P.LDS_LAT=OPT["lat"]; P.wait_merge=OPT.get("wm",20); P.pack2=OPT.get("pack2",0)
SRDX=S(4,4); SRDO=S(8,4); SRDW=S(12,4)
sWV=S(30); sQ=S(31); sWY0=S(32); sWX0=S(33); sIDX0=S(34); sMAG=S(35); sMODE=S(36); sG=S(37); sK=S(38)
sT0,sT1,sT2,sT3,sT4,sT5=[S(40+i) for i in range(6)]
sOFF=S(46); sCLS=S(47); sCUR=S(48); sOFFS=S(49); sDX=S(50); sTHR=S(51); sOFFX=S(52); sM0=S(53); sI=S(54); sM0X=S(55)
sL1=S(56); sL2=S(57); sL3=S(58)
MK=[S(60+2*i,2) for i in range(12)]
sTAB=S(84,2); sTAB2=S(86,2)

def smov64(dst,val):
    lo=val&0xffffffff; hi=(val>>32)&0xffffffff
    P.s("s_mov_b32",dst[0],lo); P.s("s_mov_b32",dst[1],hi if hi!=lo else dst[0])

sSTI=S(95); vSTAMP=[None]
def stamp(rt=False):
    if not OPT["stamps"]: return
    P.raw("s_memrealtime s[88:89]" if (rt and OPT["stamps"] in (2,5)) else "s_memtime s[88:89]",wr={"s88","s89"}); P.raw("s_waitcnt lgkmcnt(0)",kind="wait0")
    P.s("s_mov_b32",M0,sSTI); P.raw(f"v_writelane_b32 {vSTAMP[0]}, s88, m0",kind="valu",rd={"s88","m0"},wr=vSTAMP[0].regs())
    P.s("s_add_u32",sSTI,sSTI,1); P.flush(False)
def stamp_end():
    if not OPT["stamps"]: return
    stamp()
    P.raw("s_memrealtime s[88:89]",wr={"s88","s89"}); P.raw("s_waitcnt lgkmcnt(0)",kind="wait0")
    P.raw(f"v_writelane_b32 {vSTAMP[0]}, s88, 63",kind="valu",rd={"s88"},wr=vSTAMP[0].regs())
    P.raw(f"v_writelane_b32 {vSTAMP[0]}, s3, 62",kind="valu",rd={"s3"},wr=vSTAMP[0].regs())
    P.v("v_mbcnt_lo_u32_b32",V(0),-1,0); P.v("v_mbcnt_hi_u32_b32",V(0),-1,V(0)); P.v("v_lshlrev_b32",V(0),2,V(0))
    P.s("s_mov_b32",SRDW[0],S(28)); P.s("s_mov_b32",SRDW[1],S(29)); P.s("s_mov_b32",SRDW[2],1<<28)
    P.s("s_lshl_b32",sT0,sQ,3); P.s("s_add_u32",sT0,sT0,sWV); P.s("s_lshl_b32",sT0,sT0,8)
    P.vst("buffer_store_dword",vSTAMP[0],V(0),SRDW,sT0,0); P.flush(False)
    if OPT.get("dbg") is not None:
        P.raw("s_memtime s[92:93]",wr={"s92","s93"}); P.raw("s_waitcnt lgkmcnt(0)",kind="wait0")
        P.raw(f"v_writelane_b32 {vSTAMP[0]}, s88, 15",kind="valu",rd={"s88"},wr=vSTAMP[0].regs())
        P.raw(f"v_writelane_b32 {vSTAMP[0]}, s3, 14",kind="valu",rd={"s3"},wr=vSTAMP[0].regs())
        P.raw(f"v_writelane_b32 {vSTAMP[0]}, s92, 13",kind="valu",rd={"s92"},wr=vSTAMP[0].regs())
        P.s("s_mov_b32",SRDW[0],S(26)); P.s("s_mov_b32",SRDW[1],S(27))
        P.s("s_cmp_eq_u32",sT0,(100*8+OPT["dbg"])*256); P.s("s_cselect_b32",SRDW[2],64,0)
        P.vst("buffer_store_dword",vSTAMP[0],V(0),SRDW,0,0); P.flush(False)
def barrier(name,vm=None):
    if OPT["stamps"]<3: stamp(True)
    P.barrier(vm)
    if OPT["stamps"]<3 or name=="B2": stamp()

def add_marks(start,preds,typ):
    if OPT["stamps"]!=4: return
    seg=P.out[start:]; out=[Ins("s_memtime s[16:17]","other",wr={"s16","s17"})]
    pos=[pr(seg) for pr in preds]
    for k,i in enumerate(seg):
        out.append(i)
        for m,p in enumerate(pos):
            if p==k: out.append(Ins(f"s_memtime s[{18+2*m}:{19+2*m}]" if m<3 else f"s_memtime s[{88+2*(m-3)}:{89+2*(m-3)}]","other"))
    P.out[start:]=out
    P.waitl0()
    regs=[16,18,20,22,88,90]
    for m in range(len(preds)+1):
        P.raw(f"v_writelane_b32 {vSTAMP[0]}, s{regs[m]}, {8+8*typ+m}",kind="valu",wr=vSTAMP[0].regs())
    P.flush(False)
def nth(kinds,n):
    def f(seg):
        idx=[k for k,i in enumerate(seg) if i.kind in kinds]
        return idx[n]
    return f
CT=16; CA=20
sTT=S(92); sTA=S(93); sPL=S(91)
SLOW=[]
chk=[0]
def sy_cmp(off,tgt):
    if off==CT: P.s("s_cmp_lt_u32",sPL,tgt)
    else:
        P.s("s_sub_u32",sPL,sPL,tgt); P.s("s_andn2_b32",sPL,0x80808080,sPL)
def sy_poll(vsy,vp,off,deps=()):
    i=P.dsr("ds_read_b32",vp,vsy,off); i.rd|=set(deps); return i
def sy_check(vsy,vp,off,tgt,token):
    chk[0]+=1; n=chk[0]
    if OPT.get("unb",1):
        P.v("v_readfirstlane_b32",sPL,vp)
        sy_cmp(off,tgt)
        P.add(Ins(f"s_cbranch_scc1 L_sw{n}\nL_sb{n}:","other",{"scc"}|vsy.regs()|tgt.regs(),{"scc",token}|sPL.regs()|vp.regs()))
    else:
        def fn():
            P.v("v_readfirstlane_b32",sPL,vp)
            sy_cmp(off,tgt)
            P.add(Ins(f"s_cbranch_scc1 L_sw{n}","other",{"scc"},set()))
            P.add(Ins(f"L_sb{n}:","other",set(),set(),states=0,tag="soft"))
        b=P.bundle(fn); b.wr.add(token); b.cost=20
    SLOW.append((n,vsy,vp,off,tgt))
def sy_slow():
    for n,vsy,vp,off,tgt in SLOW:
        P.label(f"L_sw{n}")
        if OPT.get("sleep"): P.raw(f"s_sleep {OPT['sleep']}")
        P.dsr("ds_read_b32",vp,vsy,off); P.flush(False); P.waitl0()
        P.v("v_readfirstlane_b32",sPL,vp); sy_cmp(off,tgt); P.flush(False)
        P.branch("s_cbranch_scc1",f"L_sw{n}")
        P.branch("s_branch",f"L_sb{n}")
    SLOW.clear()
def sy_wait(vsy,vp,off,tgt):
    chk[0]+=1; n=chk[0]
    P.flush(False)
    P.label(f"L_sp{n}")
    P.dsr("ds_read_b32",vp,vsy,off); P.flush(False); P.waitl0()
    P.v("v_readfirstlane_b32",sPL,vp); P.s("s_cmp_lt_u32",sPL,tgt); P.flush(False)
    if OPT.get("sleep2"):
        P.branch("s_cbranch_scc0",f"L_sq{n}")
        P.raw(f"s_sleep {OPT['sleep2']}"); P.flush(False)
        P.branch("s_branch",f"L_sp{n}")
        P.label(f"L_sq{n}")
    else: P.branch("s_cbranch_scc1",f"L_sp{n}")
def sy_signal(vsy,off,data=None):
    data=data or vsy
    return P.add(Ins(f"ds_add_u32 {vsy}, {data} offset:{off}","dsw",vsy.regs()|data.regs(),set()))
def sy_init(vsy,tmp):
    P.v("v_mov_b32",tmp,0x00f00000); P.v("v_mov_b32",vsy,FLAG); P.v("v_cndmask_b32",vsy,tmp,vsy,S(88,2))
def spin_sync(off,va,vb,tag):
    P.v("v_mov_b32",va,FLAG+off); P.v("v_mov_b32",vb,1)
    P.s("s_mov_b64",EXEC,1)
    P.add(Ins(f"ds_add_u32 {va}, {vb}","dsw",va.regs()|vb.regs(),set()))
    P.s("s_mov_b64",EXEC,-1)
    P.flush(False); P.waitl0()
    P.label(f"L_spin{tag}")
    P.dsr("ds_read_b32",vb,va,0); P.v("v_readfirstlane_b32",sT0,vb); P.s("s_cmp_lt_u32",sT0,4); P.flush(False)
    P.branch("s_cbranch_scc1",f"L_spin{tag}")
class Pool:
    def __init__(s,bufs): s.b=bufs; s.i=0
    def get(s):
        r=s.b[s.i%len(s.b)]; s.i+=1; return r

P.label(KN)
P.raw("s_load_dwordx8 s[16:23], s[0:1], 0",wr={f"s{i}" for i in range(16,24)})
P.raw("s_load_dwordx4 s[24:27], s[0:1], 32",wr={f"s{i}" for i in range(24,28)})
if OPT["stamps"]:
    P.raw("s_load_dwordx2 s[28:29], s[0:1], 48",wr={"s28","s29"})
    P.raw("s_memrealtime s[88:89]",wr={"s88","s89"}); P.raw("s_waitcnt lgkmcnt(0)",kind="wait0"); P.s("s_mov_b32",S(3),S(88))
P.s("s_and_b32",sT0,S(2),7); P.s("s_lshl_b32",sT0,sT0,5); P.s("s_lshr_b32",sT1,S(2),3); P.s("s_add_u32",sQ,sT0,sT1)
if OPT.get("noxcd"): P.s("s_mov_b32",sQ,S(2))
P.s("s_cmp_ge_u32",S(2),256); P.s("s_cselect_b32",sQ,999,sQ)
P.s("s_cmp_ge_u32",sQ,NWG); P.flush(False); P.branch("s_cbranch_scc1","L_end")
if OPT.get("dly0"):
    for _ in range(OPT["dly0"]): P.raw("s_sleep 64")
vL=V(255)
P.v("v_lshrrev_b32",V(253),6,V(0)); P.v("v_and_b32",vL,63,V(0)); P.v("v_readfirstlane_b32",sWV,V(253))
P.s("s_mov_b32",sMODE,0); P.s("s_mov_b32",sSTI,0); P.s("s_mov_b32",SRDW[3],0x20000)
P.s("s_cmp_ge_u32",sWV,4); P.flush(False); P.branch("s_cbranch_scc1","L_T")

WQK=lambda f,j: V(12*f+4*j,4)
WV=lambda d,j: V(36+12*d+4*j,4)
VV=lambda w,d,ks: V(60+16*w+8*d+4*ks,4)
KT=lambda T: V(108+4*T,4)
QT=lambda T: V(124+4*T,4)
QX=lambda w: V(136+4*w,4)
class SB:
    def __init__(s,b): s.b=b
    def t(s,kt): return V(s.b+{2:2,0:6,1:10,3:14}[kt],4)
    def p(s,ks): return V(s.b+6,4) if ks==0 else V(s.b,4)
    def o(s,d): return s.t(1) if d==0 else s.t(3)
SXB=SB(148); SB0=SB(178); SB1=SB(196)
aH=V(148); aO1=V(178); aO2=V(196)
ONES=V(166,4)
CM=lambda w: V(170+2*w,4)
vCHK=V(171); vM=V(173); vM2=V(175); aSY=V(127); aPL=V(255); aONE=V(131)
HBASE=214
ACCP=[V(238+4*i,4) for i in range(4)]

def a_prefetch():
    if not OPT.get("pref"): return
    nsl=OPT["pref"]
    P.s("s_cmp_lg_u32",sWV,0); P.flush(False); P.branch("s_cbranch_scc1","L_nopref")
    P.raw("s_getpc_b64 s[84:85]",wr={"s84","s85"})
    P.flush(False); P.out.append(Ins("L_pc:","other",states=0,tag="soft"))
    P.s("s_lshr_b32",sT0,S(2),3); P.s("s_and_b32",sT0,sT0,7); P.s("s_lshl_b32",sT0,sT0,13)
    P.v("v_lshlrev_b32",V(250),7,vL); P.v("v_add_u32",V(250),sT0,V(250))
    P.raw(f"v_min_u32 v250, L_hotend-L_pc, v250",kind="valu",rd={"v250"},wr={"v250"})
    P.raw("global_load_dword v251, v250, s[84:85]",kind="vld",rd={"v250","s84","s85"},wr={"v251"})
    P.flush(False)
    P.label("L_nopref")
def a_prologue():
    a_prefetch()
    l16=V(200); g=V(201); t=V(202); r=V(203); c=V(204); a0=V(205); aZ=V(206); aY=V(207); aV1=V(208); x=V(209); y=V(210); z=V(211); ad=V(236)
    P.v("v_lshlrev_b32",l16,4,vL)
    def wdma(part):
        lo,hi=(0,OPT.get('wearly',0)) if part==0 else (OPT.get('wearly',0),14)
        if lo==hi: return
        if lo==0: P.s("s_mov_b32",SRDW[0],S(20)); P.s("s_mov_b32",SRDW[1],S(21)); P.s("s_mov_b32",SRDW[2],55296)
        if lo==0: P.s("s_and_b32",sT0,sQ,31); P.s("s_mul_i32",sT0,sT0,OPT.get("rot",13)); P.s("s_add_u32",sT0,sT0,sWV)
        if lo==0: P.s("s_mul_i32",sT5,sT0,1214); P.s("s_lshr_b32",sT5,sT5,16); P.s("s_mul_i32",sT5,sT5,54); P.s("s_sub_u32",sT0,sT0,sT5)
        if lo==0: P.s("s_lshl_b32",sT4,sT0,10)
        for n in range(lo,hi):
            if OPT.get("wfirst")==n: P.flush(False); barrier("BE")
            P.s("s_add_u32",M0,sT4,WSTG)
            P.dma(l16,SRDW,sT4)
            if n<13:
                P.s("s_add_u32",sT4,sT4,4096); P.s("s_cmp_ge_u32",sT4,55296); P.s("s_cselect_b32",sT5,55296,0); P.s("s_sub_u32",sT4,sT4,sT5)
    if OPT.get("wearly",0): P.flush(False); P.waitl0(); wdma(0)
    P.s("s_mul_i32",sT1,sWV,48); P.s("s_add_u32",sT1,sT1,WSTG)
    P.v("v_lshrrev_b32",g,4,vL); P.v("v_and_b32",t,15,vL); P.v("v_lshrrev_b32",r,2,t); P.v("v_and_b32",c,3,vL)
    P.v("v_lshrrev_b32",x,1,g); P.v("v_lshlrev_b32",x,4,x); P.v("v_and_b32",y,1,g); P.v("v_lshlrev_b32",y,2,y)
    P.v("v_add3_u32",x,x,y,r); P.v("v_mul_u32_u24",x,576,x)
    P.v("v_add_u32",x,sT1,x)
    P.v("v_lshl_add_u32",a0,c,3,x)
    P.v("v_lshrrev_b32",y,1,c); P.v("v_lshl_add_u32",aV1,y,3,x); P.v("v_add_u32",aV1,32,aV1)
    P.v("v_and_b32",y,1,c); P.v("v_mul_u32_u24",y,192,y)
    P.v("v_add_u32",aZ,aV1,y)
    P.v("v_sub_u32",aY,aV1,y); P.v("v_add_u32",aY,192,aY)
    P.v("v_add_u32",aH,R1,l16)
    P.s("s_lshr_b32",sT0,sWV,1); P.s("s_mul_i32",sT0,sT0,1024); P.s("s_and_b32",sT2,sWV,1); P.s("s_lshl_b32",sT2,sT2,3)
    P.s("s_add_u32",sT0,sT0,sT2); P.s("s_add_u32",sT0,sT0,R2); P.v("v_add_u32",aO1,sT0,l16)
    P.s("s_lshl_b32",sT0,sWV,2); P.s("s_add_u32",sT0,sT0,R2+2048); P.v("v_add_u32",aO2,sT0,l16)
    for w in range(3): smov64(MK[w],lanemask(lambda l:(l&15)==4*w))
    smov64(MK[3],lanemask(lambda l:(l&3)>=2))
    for w in range(3): smov64(MK[4+w],lanemask(lambda l:(l>>4)==w))
    smov64(MK[7],lanemask(lambda l:(l>>4)==((l&15)>>2)))
    smov64(MK[8],lanemask(lambda l:((l>>2)&1)==0))
    smov64(MK[9],lanemask(lambda l:((l>>2)&1)==((l>>1)&1)))
    P.s("s_mov_b32",sTHR,f2u(OPT["thr"]) if not OPT["force_slow"] else f2u(0.0))
    P.v("v_mov_b32",x,0x3f800000)
    for i in range(4): P.v("v_cndmask_b32",ONES[i],0,x,MK[3])
    P.v("v_mov_b32",x,0xff800000)
    for w in range(4): P.v("v_cndmask_b32",CM(w)[0],x,0,MK[4+w])
    for T in range(4): P.v("v_mov_b32",KT(T)[3],0)
    for T in range(3):
        P.v("v_mov_b32",QT(T)[3],0)
        for i in range(4): P.v("v_mov_b32",QX(T)[i],0)
        for d in range(2): P.v("v_mov_b32",VV(T,d,1)[0],0)
    P.v("v_mov_b32",vCHK,0)
    P.v("v_mov_b32",y,FLAG); P.dsw("ds_write_b32",y,vCHK,0); P.dsw("ds_write_b32",y,vCHK,4); P.dsw("ds_write_b32",y,vCHK,8); P.dsw("ds_write_b32",y,vCHK,CT); P.dsw("ds_write_b32",y,vCHK,CA)
    P.s("s_mov_b64",S(88,2),1); sy_init(aSY,x)
    P.s("s_lshl_b32",sT0,sWV,3); P.s("s_lshl_b32",sT0,1,sT0); P.v("v_mov_b32",aONE,sT0)
    P.flush(False)
    if OPT.get("wfirst")is None: barrier("BE")
    else: P.waitl0()
    wdma(1)
    P.s("s_mov_b64",VCC,MK[9])
    P.flush(False)
    if OPT.get("fine"): stamp()
    P.waitv(0)
    if OPT.get("fine"): stamp()
    spin_sync(8,x,y,"A")
    P.raw(f"s_setprio {OPT.get('trprio',2)}"); P.flush(False)
    if OPT.get("fine"): P.flush(False); stamp()
    for j in range(3):
        for hh in range(2):
            off=(32*j+8*hh)*576
            P.dsr("ds_read_b64_tr_b16",WQK(1,j)[2*hh:2*hh+2],aZ,off)
            P.dsr("ds_read_b64_tr_b16",V(212+4*j+2*hh,2),aY,off)
            P.dsr("ds_read_b64_tr_b16",WV(1,j)[2*hh:2*hh+2],aV1,off+384)
    for j in range(3):
        for hh in range(2):
            off=(32*j+8*hh)*576
            P.dsr("ds_read_b64_tr_b16",WQK(0,j)[2*hh:2*hh+2],a0,off)
            P.dsr("ds_read_b64_tr_b16",WQK(2,j)[2*hh:2*hh+2],a0,off+192)
            P.dsr("ds_read_b64_tr_b16",WV(0,j)[2*hh:2*hh+2],a0,off+384)
    for j in range(3):
        for i in range(4):
            P.v("v_cndmask_b32_dpp",WQK(1,j)[i],V(212+4*j+i),WQK(1,j)[i],VCC,mod="quad_perm:[2,3,0,1] row_mask:0xf bank_mask:0xf")
    P.s("s_mov_b64",VCC,MK[8])
    for j in range(3):
        for i in range(4):
            P.v("v_cndmask_b32_dpp",V(224+4*j+i),WV(1,j)[i],WV(1,j)[i],VCC,mod="quad_perm:[2,3,0,1] row_mask:0xf bank_mask:0xf")
    for j in range(3):
        for i in range(4):
            P.v("v_cndmask_b32",WV(1,j)[i],V(224+4*j+i),0,MK[3])
    P.flush(True)
    P.raw("s_setprio 0"); P.flush(False)
    barrier("B1")
def a_guard():
    x=V(209); y=V(210)
    for d in range(2):
        P.v("v_mov_b32",x,0)
        for j in range(3):
            for i in range(4):
                P.v("v_and_b32",y,0x7fff7fff,WV(d,j)[i]); P.v("v_pk_max_u16",x,x,y)
        P.v("v_lshrrev_b32",y,16,x); P.v("v_and_b32",x,0xffff,x); P.v("v_max_u32",x,x,y)
        P.v("v_cmp_lt_u32",VCC,(127+50)<<7,x)
        P.s("s_cmp_lg_u64",VCC,0); P.s("s_cselect_b32",sTHR,f2u(-1.0),sTHR)
        P.v("v_subrev_u32",x,1,x); P.v("v_cmp_gt_u32",VCC,(127-30)<<7,x)
        P.s("s_cmp_lg_u64",VCC,0); P.s("s_cselect_b32",sTHR,f2u(-1.0),sTHR)

class AState: pass
AS=AState()
def a_begin():
    if P.cur and OPT.get("merge",1) and hasattr(AS,"hp") and OPT.get("keep",1): return
    AS.hp=Pool([V(HBASE+4*i,4) for i in range(6)]); AS.ap=Pool(ACCP)
def a_load(off):
    h=[AS.hp.get() for _ in range(3)]
    for j in range(3): P.dsr("ds_read_b128",h[j],aH,off+1024*j,mem={"OKT"})
    return h
def a_chain(h,ch,kind,w,T):
    acc=AS.ap.get()
    if ch<3:
        for j in range(3): P.mfma(acc,WQK(ch,j),h[j],0 if j==0 else acc)
    else:
        d=ch-3
        for j in range(3): P.mfma(acc,h[j],WV(d,j),(0 if d==0 else ONES) if j==0 else acc)
    k=KT(T)
    def qx(pairs):
        for dst,a_,b_ in pairs:
            P.cvt(acc[a_],acc[a_],acc[b_])
            for ww in range(3): P.v("v_cndmask_b32",QX(ww)[dst],0,acc[a_],MK[ww])
    if ch==0:
        if kind=="x": qx([(0,0,1),(1,2,3)])
        else: P.cvt(QT(T)[0],acc[0],acc[1]); P.cvt(QT(T)[1],acc[2],acc[3])
    elif ch==1:
        P.cvt(k[2],acc[2],acc[3])
        if kind=="x": qx([(2,0,1)])
        else: P.cvt(QT(T)[2],acc[0],acc[1])
    elif ch==2:
        P.cvt(k[0],acc[0],acc[1]); P.cvt(k[1],acc[2],acc[3])
    else:
        d=ch-3
        if kind=="x":
            for ww in range(2): P.cvt(VV(ww,d,1)[1],acc[0],acc[1])
        else:
            dst=VV(w,d,T>>1); o=2*(T&1) if T<2 else 2
            P.cvt(dst[o],acc[0],acc[1]); P.cvt(dst[o+1],acc[2],acc[3])

def a_norm_store(oa0,oa1,off,usemax):
    r=oa1[3]; l=oa1[2]
    P.v("v_rcp_f32",r,l)
    if not usemax: P.v("v_max3_f32",vCHK,vCHK,l,r)
    P.v("v_mul_f32",r,f2u(1.0/math.sqrt(c_scale)),r)
    for i in range(4): P.v("v_mul_f32",oa0[i],oa0[i],r)
    for i in range(2): P.v("v_mul_f32",oa1[i],oa1[i],r)
    P.cvt(oa0[0],oa0[0],oa0[1]); P.cvt(oa0[1],oa0[2],oa0[3]); P.cvt(oa1[0],oa1[0],oa1[1])
    for i in (P.dsw("ds_write_b64",aO1,oa0[0:2],off), P.dsw("ds_write_b32",aO2,oa1[0],off)): i.rd|={"OKT","OW"}

def a_softmax(sb,usemax):
    regs=[(kt,i) for kt in range(3) for i in range(4)]+[(3,0)]
    if usemax:
        m=vM; m2=vM2
        P.v("v_max3_f32",m,sb.t(0)[0],sb.t(0)[1],sb.t(0)[2])
        rest=[sb.t(kt)[i] for kt,i in regs[3:]]
        for a in range(0,10,2): P.v("v_max3_f32",m,m,rest[a],rest[a+1])
        P.v("v_mov_b32",m2,m); P.v("v_permlane16_swap_b32",m,m2); P.v("v_max_f32",m,m,m2)
        P.v("v_mov_b32",m2,m); P.v("v_permlane32_swap_b32",m,m2); P.v("v_max_f32",m,m,m2)
        for kt,i in regs: P.v("v_sub_f32",sb.t(kt)[i],sb.t(kt)[i],m)
    p0=sb.p(0); p1=sb.p(1)
    for kt in range(4):
        s=sb.t(kt)
        for i in range(4 if kt<3 else 1): P.v("v_exp_f32",s[i],s[i])
        if kt<2: P.cvt(p0[2*kt],s[0],s[1]); P.cvt(p0[2*kt+1],s[2],s[3])
        elif kt==2: P.cvt(p1[2],s[0],s[1]); P.cvt(p1[3],s[2],s[3])
        else: P.cvt(p1[1],s[0],0)

def a_S(sb,q,w):
    for kt in range(4): P.mfma(sb.t(kt),KT(kt),QT(q),0 if kt<3 else CM(w))
def a_SX(w):
    for kt in range(4): P.mfma(SXB.t(kt),KT(kt),QX(w),(0 if kt<3 else CM(3)) if w==0 else SXB.t(kt))
def a_job(sb,q,w,usemax):
    a_softmax(sb,usemax)
    for d in (1,0):
        P.mfma(sb.o(d),VV(w,d,0),sb.p(0),0); P.mfma(sb.o(d),VV(w,d,1),sb.p(1),sb.o(d))
    a_norm_store(sb.o(0),sb.o(1),OS[w]+3072*q,usemax)
def a_xjob(usemax):
    sb=SXB
    a_softmax(sb,usemax)
    for d in (1,0):
        P.mfma(sb.o(d),VV(0,d,0),sb.p(0),0); P.mfma(sb.o(d),VV(0,d,1),sb.p(1),sb.o(d))
    for ww in (1,2):
        for d,n in ((1,3),(0,4)):
            acc=AS.ap.get()
            P.mfma(acc,VV(ww,d,0),sb.p(0),0); P.mfma(acc,VV(ww,d,1),sb.p(1),acc)
            for i in range(n): P.v("v_cndmask_b32",sb.o(d)[i],sb.o(d)[i],acc[i],MK[ww])
    a_norm_store(sb.o(0),sb.o(1),OX,usemax)

def prio_wrap(start,pr):
    seg=P.out[start:]
    n=len(seg); up=set(); down=set()
    isds=lambda i:i.kind in("dsr","dsw")
    mf=[k for k,i in enumerate(seg) if i.kind in MF]
    hi=[False]*n
    for k,i in enumerate(seg):
        if isds(i):
            prev=[m for m in mf if m<k]; nxt=[m for m in mf if m>k]
            a=prev[-2] if len(prev)>=2 else -1
            b=nxt[0] if nxt else n-1
            for x in range(a+1,b+1): hi[x]=True
    out=[]; cur=False
    for k,i in enumerate(seg):
        if hi[k]!=cur:
            out.append(Ins(f"s_setprio {pr if hi[k] else 0}","other")); cur=hi[k]
        out.append(i)
    if cur: out.append(Ins("s_setprio 0","other"))
    P.out[start:]=out
def a_step(w,usemax,attn=True,qkv=True,fl=True):
    st0=len(P.out)
    wn=(w+1)%3
    a_begin()
    Hn=lambda T: HS[wn]+3072*T
    if attn and qkv:
        P.s("s_add_u32",sTT,sTT,4*FLAG)
        sy_poll(aSY,aPL,CT,deps=("OW",)); sy_check(aSY,aPL,CT,sTT,"OKT")
    if not attn:
        hx=a_load(HX); h0=a_load(Hn(0))
        for ch in range(5): a_chain(hx,ch,"x",0,3)
        h1=a_load(Hn(1))
        for ch in range(5): a_chain(h0,ch,"n",wn,0)
        h2=a_load(Hn(2))
        for ch in range(5): a_chain(h1,ch,"n",wn,1)
        for ch in range(5): a_chain(h2,ch,"n",wn,2)
    elif not qkv:
        a_S(SB0,0,w); a_SX(w); a_S(SB1,1,w)
        a_job(SB0,0,w,usemax); a_S(SB0,2,w)
        if w==2: a_xjob(usemax)
        a_job(SB1,1,w,usemax); a_job(SB0,2,w,usemax)
    elif w!=2:
        h0=a_load(Hn(0)); h1=a_load(Hn(1))
        if OPT.get("atop"): P.flush(False)
        if w==0:
            for d in range(2): P.v("v_mov_b32",VV(2,d,1)[1],VV(0,d,1)[1])
        a_S(SB0,0,w); a_S(SB1,1,w); a_SX(w)
        for ch in (3,4,0): a_chain(h0,ch,"n",wn,0)
        a_job(SB0,0,w,usemax)
        for ch in (3,4,0): a_chain(h1,ch,"n",wn,1)
        a_S(SB0,2,w)
        for ch in (1,2): a_chain(h0,ch,"n",wn,0)
        h2=a_load(Hn(2))
        a_job(SB1,1,w,usemax)
        for ch in (1,2): a_chain(h1,ch,"n",wn,1)
        a_job(SB0,2,w,usemax)
        for ch in range(5): a_chain(h2,ch,"n",wn,2)
    else:
        h0=a_load(Hn(0)); h1=a_load(Hn(1))
        if OPT.get("atop"): P.flush(False)
        a_S(SB0,0,w); a_SX(w); a_S(SB1,1,w)
        a_chain(h0,0,"n",wn,0); a_chain(h1,0,"n",wn,1)
        a_job(SB0,0,w,usemax)
        a_S(SB0,2,w)
        a_xjob(usemax)
        for ch in (1,2,3,4): a_chain(h0,ch,"n",wn,0)
        h2=a_load(Hn(2))
        a_job(SB1,1,w,usemax)
        for ch in (1,2,3,4): a_chain(h1,ch,"n",wn,1)
        hx=a_load(HX)
        a_job(SB0,2,w,usemax)
        for ch in range(5): a_chain(h2,ch,"n",wn,2)
        for ch in range(5): a_chain(hx,ch,"x",0,3)
    if attn:
        i=sy_signal(aSY,CA,aONE); i.wr.add("OW")
    if not fl: return
    if OPT.get("noA"): P.cur=[]; P.last_len=0
    if OPT.get("Aonly"): P.cur=[i for i in P.cur if i.kind in OPT["Aonly"]]
    P.flush(True,mf_gap=OPT["gapA"])
    if OPT.get("aprio"): prio_wrap(st0,OPT["aprio"])
    if attn and qkv and not usemax: add_marks(st0,[nth(MF,x) for x in OPT["amarks"]] if OPT.get("amarks") else [nth(MF,11),nth(MF,12),nth(MF,36),nth(MF,60),nth(("dsw",),-1)],w)

def a_pass(usemax,tag):
    P.s("s_mov_b32",sTT,0); P.s("s_mov_b32",sG,0)
    a_step(2,usemax,attn=False)
    P.waitl0()
    if OPT["stamps"]: stamp()
    if OPT.get("merge",1) and not usemax:
        P.label(f"L_A{tag}loop")
        P.s("s_add_u32",sG,sG,1)
        a_step(0,usemax,fl=False); a_step(1,usemax,fl=False); a_step(2,usemax)
        P.s("s_cmp_lt_u32",sG,6); P.flush(False); P.branch("s_cbranch_scc1",f"L_A{tag}loop")
        a_step(0,usemax,fl=False); a_step(1,usemax,fl=False); a_step(2,usemax,qkv=False)
        return
    P.label(f"L_A{tag}loop")
    a_step(0,usemax)
    if OPT["stamps"]==1: stamp()
    if OPT["stamps"]==5: stamp(); stamp(True)
    a_step(1,usemax)
    if OPT["stamps"]==5: stamp(); stamp(True)
    if OPT["stamps"]==1: stamp()
    P.s("s_add_u32",sG,sG,1); P.s("s_cmp_eq_u32",sG,7); P.flush(False); P.branch("s_cbranch_scc1",f"L_A{tag}last")
    a_step(2,usemax)
    if OPT["stamps"]==5: stamp(); stamp(True)
    if OPT["stamps"]==1: stamp()
    P.branch("s_branch",f"L_A{tag}loop")
    P.label(f"L_A{tag}last")
    a_step(2,usemax,qkv=False)

vSTAMP[0]=V(254); stamp()
a_prologue()
if OPT["prioA"]: P.raw(f"s_setprio {OPT['prioA']}")
a_pass(False,"f")
a_guard()
if OPT.get("noA") or OPT.get("noT") or OPT.get("Aonly"): P.v("v_mov_b32",vCHK,0)
P.v("v_cmp_nge_f32",VCC,sTHR,vCHK); P.v("v_mov_b32",V(238),FLAG); P.v("v_mov_b32",V(239),1)
P.flush(False)
P.branch("s_cbranch_vccz","L_Anoflag")
P.dsw("ds_write_b32",V(238),V(239),0); P.flush(False); P.waitl0()
P.label("L_Anoflag")
P.barrier()
P.dsr("ds_read_b32",V(239),V(238),0); P.v("v_cmp_ne_u32",VCC,0,V(239)); P.flush(False)
P.branch("s_cbranch_vccnz","L_Asafe")
stamp_end()
P.raw("s_endpgm"); P.flush(False)
sy_slow()
def emit_safe():
    P.max_lds=12
    P.label("L_Asafe")
    st=OPT["stamps"]; OPT["stamps"]=0
    P.v("v_mov_b32",V(239),0); P.dsw("ds_write_b32",V(238),V(239),CT); P.dsw("ds_write_b32",V(238),V(239),CA); P.flush(False)
    P.barrier(); P.barrier()
    a_pass(True,"s")
    P.barrier()
    P.raw("s_endpgm"); P.flush(False)
    sy_slow()
    OPT["stamps"]=st

CW=lambda c,k: V(12*c+4*k,4)
vIDX=V(72); vA1=V(73); vA2=V(74); vBP=V(75)
WO=lambda j,e,p: V(76+24*j+12*e+4*p,4)
PERM=lambda e: V(148+4*e,4)
TONES=V(156,4)
ACC=lambda c: V(160+4*c,4)
XBR=lambda j: V(184+4*j,4)
SUM=V(196,4); GRAM=V(200,4)
vK2=V(204); vLW=V(205); vLX=V(206); vLO=V(207); vLXX=V(208)
vDM=[V(209),V(210)]; vDC=[V(211),V(212)]
tSY=V(214); tPL=V(215)
vST=[V(217),V(218)]; vXSB=V(219); vXS=V(220)
vRS=V(221); vB=V(222); vT=V(223); vTAB=V(224); vQ=V(225); vXI=V(226); vTT=V(227)
CH0=[0,1,4,5,8,9]
sROW=S(59); sEDGE=S(39); sNR=S(94)
mL=MK[8]; mR=MK[9]; m53=MK[10]; m39=MK[11]
DWSTG=XSL[2]

MID=[]
def t_conv(base,rowu,p4,p8):
    off=lambda i,j,c0: base+16*(rowu*i+13*j+c0)
    for c in range(6):
        c0=CH0[c]
        b0=p4.get(); b1=p8.get(); b2=p8.get()
        P.dsr("ds_read_b128",b0,vA1,off(1,1,c0))
        P.dsr("ds_read_b128",b1[0:4],vA1,off(0,0,c0)); P.dsr("ds_read_b128",b1[4:8],vA1,off(1,0,c0))
        P.dsr("ds_read_b128",b2[0:4],vA1,off(2,0,c0)); P.dsr("ds_read_b128",b2[4:8],vA2,off(0,2,c0))
        P.mfma(ACC(c),CW(c,0),b0,0).wr.add(f"CV{c}"); P.smfmac(ACC(c),CW(c,1),b1,vIDX); P.smfmac(ACC(c),CW(c,2),b2,vIDX)
        x=XBR(c>>1); o=2*(c&1)
        P.cvt(x[o],ACC(c)[0],ACC(c)[1]); P.cvt(x[o+1],ACC(c)[2],ACC(c)[3])
        if c&1:
            j=c>>1
            P.mfma(GRAM,XBR(j),XBR(j),0 if j==0 else GRAM); P.mfma(SUM,TONES,XBR(j),0 if j==0 else SUM)
    P.v("v_cndmask_b32",vT,GRAM[0],GRAM[1],MK[1]); P.v("v_cndmask_b32",vT,vT,GRAM[2],MK[2]); P.v("v_cndmask_b32",vT,vT,GRAM[3],MK[3])
    i=P.bperm(vQ,vBP,vT); i.wr.add("GAP")
    if MID: MID.pop()()
    P.v("v_mul_f32",vRS,SUM[0],SUM[0])
    P.v("v_fmamk_f32",vRS,vRS,f2u(-1.0/(96*96*c_scale)),vK2)
    P.v("v_mul_f32",vB,f2u(-1.0/96),SUM[0])
    P.v("v_fmamk_f32",vT,vQ,f2u(1.0/(96*c_scale)),vRS,extra_wr={"LNGO"})
    P.v("v_max_f32",vT,vT,vK2)
    P.v("v_rsq_f32",vRS,vT)
    P.v("v_mul_f32",vB,vB,vRS)
def t_xbw(addrX,offX):
    for j in range(3): P.dsw("ds_write_b128",addrX,XBR(j),offX+1024*j)
def t_ln(addrH,offH):
    for c in range(6):
        for i in range(4): P.v("v_fma_f32",ACC(c)[i],ACC(c)[i],vRS,vB)
        h=ACC(c&~1); o=2*(c&1)
        P.cvt(h[o],ACC(c)[0],ACC(c)[1]); P.cvt(h[o+1],ACC(c)[2],ACC(c)[3])
        if c&1: P.dsw("ds_write_b128",addrH,h,offH+1024*(c>>1)).rd.add("OKA")

def t_unit(jw,ob,xb,acc,voff,soff,stoff,dep=None):
    for e in range(2):
        i=P.mfma(acc[e],PERM(e),xb,0)
        if dep: i.rd.add(dep)
        for p in range(3): P.mfma(acc[e],WO(jw,e,p),ob[p],acc[e])
    pk=acc[0]
    for e in range(2):
        P.cvt(pk[2*e],acc[e][0],acc[e][1]); P.cvt(pk[2*e+1],acc[e][2],acc[e][3])
    P.vst("buffer_store_dwordx4",pk,voff,SRDO,soff,stoff,mod=OPT.get("stmod",""))
    if OPT.get("st2"): P.vst("buffer_store_dwordx4",pk,voff,SRDO,soff,stoff,mod=OPT.get("stmod",""))

uid=[0]
def t_lookup(lane_s,dst,nr,nrec,cls=None):
    P.v("v_readlane_b32",dst,vTAB,lane_s)
    if cls is not None: P.s("s_and_b32",cls,dst,63)
    P.s("s_cmp_lt_u32",dst,INV); P.s("s_cselect_b32",nr,nrec,0)
    P.s("s_and_b32",dst,dst,0x3fffffc0)
def t_dma_prep():
    P.s("s_add_u32",sL1,sK,12)
    t_lookup(sL1,sOFF,sNR,XBYTES+BIAS,sCLS)
    P.s("s_add_u32",sOFF,sOFF,sROW)
    P.s("s_cmp_eq_u32",sCLS,sCUR)
    P.flush(False)
    uid[0]+=1; lab=f"L_cls{uid[0]}"
    P.branch("s_cbranch_scc1",lab)
    P.s("s_mov_b32",sCUR,sCLS)
    for n,(bit,m) in enumerate(((8,mL),(16,mR))):
        P.s("s_and_b32",sT0,sCLS,bit); P.s("s_cselect_b64",sTAB,m,0)
        P.v("v_or_b32",vTT,0x80000000,vDC[n]); P.v("v_cndmask_b32",vDM[n],vDC[n],vTT,sTAB)
    P.flush(False)
    P.label(lab)
def t_dma_rows(is3,slot,deps=()):
    nr=3 if is3 else 2
    for r in range(nr):
        edge = (r==nr-1) if is3 else (r==0)
        def fn():
            if edge:
                P.s("s_and_b32",sT0,sCLS,sEDGE); P.s("s_cselect_b32",SRDX[2],0,sNR)
            else: P.s("s_mov_b32",SRDX[2],sNR)
            P.s("s_add_u32",M0,sM0,XSL[slot]+117*16*r); P.s("s_add_u32",sT1,sOFF,ROWB*r)
            P.dma(vDM[0],SRDX,sT1,mod=OPT.get("ldmod",""))
            P.s("s_add_u32",M0,sM0,XSL[slot]+117*16*r+1024); P.s("s_mov_b64",EXEC,m53)
            P.dma(vDM[1],SRDX,sT1,mod=OPT.get("ldmod",""))
            P.s("s_mov_b64",EXEC,-1)
        bd=P.bundle(fn); bd.cost=OPT.get("dmacost",128)
        if r<len(deps) and deps[r]: bd.rd.add(deps[r])
        if r<OPT.get("dmafirst",0): P.flush(False)
    return 2*nr
def t_dma_xx(dep=None):
    P.s("s_add_u32",sL2,sK,sI); P.s("s_add_u32",sL2,sL2,12)
    t_lookup(sL2,sOFFX,sT4,XBYTES+BIAS)
    def fn():
        P.s("s_mov_b32",SRDX[2],sT4); P.s("s_mov_b64",EXEC,m39)
        for r in range(3):
            P.s("s_add_u32",M0,sM0X,XX+39*16*r); P.s("s_add_u32",sT1,sOFFX,(XTOK[0]+r)*ROWB+XTOK[1]*192)
            P.dma(vDC[0],SRDX,sT1,mod=OPT.get("ldmod",""))
        P.s("s_mov_b64",EXEC,-1)
    bd=P.bundle(fn); bd.cost=OPT.get("dmacost",128)
    if dep: bd.rd.add(dep)
    return 3
def t_store_setup():
    P.s("s_add_u32",sL3,sK,7)
    t_lookup(sL3,sOFFS,SRDO[2],XBYTES)

def tok_extract(dy,dx,sh):
    P.v("v_lshrrev_b64",V(250,2),sh,sTAB); P.v("v_and_b32",dy,7,V(250))
    P.v("v_lshrrev_b64",V(250,2),sh,sTAB2); P.v("v_and_b32",dx,7,V(250))
LATE=[]
def t_late():
    df=OPT["dmafirst"]; OPT["dmafirst"]=0
    is3,n=LATE.pop(); t_dma_rows(is3,n,deps=("GAP","GAP","GAP")); OPT["dmafirst"]=df
def t_start_dma(is3,n,late=False):
    P.s("s_mov_b32",sK,n-4); t_dma_prep()
    if late:
        LATE.append((is3,n)); return 6 if is3 else 4
    c=t_dma_rows(is3,n)
    if n==0 and not is3: c+=t_dma_xx()
    return c
def t_init_state(is3):
    if is3: P.v("v_add_u32",vLXX,XBX0,vLW)
    else: P.v("v_add_u32",vLXX,XBX0,vLX)
    P.s("s_mov_b32",sDX,XBX1-XBX0)

def t_prologue(is3):
    g=V(228); t=V(229); x=V(230); y=V(231); z=V(232); u=V(233); l16=V(234); sh=V(235); pi=V(236); py=V(237); px=V(238); cc=V(239)
    wa=[V(240),V(241),V(242)]
    P.s("s_sub_u32",sI,sWV,4)
    P.s("s_mul_i32",sT0,sQ,898); P.s("s_lshr_b32",sT0,sT0,16)
    P.s("s_mul_i32",sT1,sT0,73); P.s("s_sub_u32",sT1,sQ,sT1)
    P.s("s_mul_i32",sWX0,sT0,21); P.s("s_mul_i32",sT2,sT1,21)
    P.s("s_cmp_eq_u32",sT0,3)
    P.s("s_cselect_b32",sWY0,0,sT1); P.s("s_cselect_b32",sIDX0,sT2,0); P.s("s_cselect_b32",sMAG,6554,0)
    P.v("v_subrev_u32",u,8,vL)
    if OPT.get("map","band")=="band":
        P.v("v_add_u32",x,sIDX0,u)
        P.v("v_mul_u32_u24",y,sMAG,x); P.v("v_lshrrev_b32",y,16,y); P.v("v_mul_u32_u24",z,10,y); P.v("v_sub_u32",x,x,z)
        P.v("v_add_u32",y,sWY0,y); P.v("v_add_u32",x,sWX0,x)
    else:
        P.v("v_and_b32",x,31,u); P.v("v_lshlrev_b32",x,8,x); P.v("v_add_u32",x,sQ,x)
        P.v("v_mul_u32_u24",y,57457,x); P.v("v_lshrrev_b32",y,22,y); P.v("v_mul_u32_u24",z,73,y); P.v("v_sub_u32",x,x,z)
    P.v("v_mul_u32_u24",z,7*ROWB,y); P.v("v_mul_u32_u24",pi,7*192,x); P.v("v_add3_u32",vTAB,z,pi,4)
    P.v("v_cmp_eq_u32",MK[0],0,y); P.v("v_cmp_eq_u32",MK[2],0,x); P.s("s_movk_i32",sT0,72)
    P.v("v_cmp_eq_u32",MK[1],sT0,y); P.v("v_cmp_eq_u32",MK[3],sT0,x)
    P.v("v_cmp_gt_u32",MK[4],NWIN,u); P.v("v_cmp_ge_u32",MK[5],sT0,y)
    P.v("v_cndmask_b32",z,0,1,MK[0]); P.v("v_cndmask_b32",pi,0,2,MK[1]); P.v("v_or3_b32",vTAB,vTAB,z,pi)
    P.v("v_cndmask_b32",z,0,8,MK[2]); P.v("v_cndmask_b32",pi,0,16,MK[3]); P.v("v_or3_b32",vTAB,vTAB,z,pi)
    P.s("s_and_b64",MK[4],MK[4],MK[5]); P.v("v_mov_b32",z,INV|4); P.v("v_cndmask_b32",vTAB,z,vTAB,MK[4])
    for n in range(2):
        P.v("v_add_u32",u,64*n,vL)
        P.v("v_mul_u32_u24",pi,5042,u); P.v("v_lshrrev_b32",pi,16,pi)
        P.v("v_sub_u32",x,u,pi); P.v("v_lshlrev_b32",x,4,x)
        smov64(sTAB,lanemask(lambda l:(64*n+l)%13==12))
        P.v("v_or_b32",y,0x80000000,x); P.v("v_cndmask_b32",vDC[n],x,y,sTAB)
    smov64(mL,lanemask(lambda l:l<13)); smov64(mR,lanemask(lambda l:64+l>=104))
    smov64(m53,lanemask(lambda l:l<53)); smov64(m39,lanemask(lambda l:l<39))
    P.s("s_mul_i32",sROW,sI,2*ROWB); P.s("s_mul_i32",sM0,sI,2*117*16); P.s("s_mul_i32",sM0X,sI,132*16); P.s("s_mov_b32",sCUR,4)
    P.v("v_mov_b32",vDM[0],vDC[0]); P.v("v_mov_b32",vDM[1],vDC[1])
    if is3: P.s("s_mov_b32",sEDGE,2)
    else: P.s("s_cmp_eq_u32",sI,0); P.s("s_cselect_b32",sEDGE,1,0)
    P.v("v_lshlrev_b32",l16,4,vL)
    P.flush(False); P.waitl0()
    if OPT.get("fine"): stamp()
    P.s("s_sub_u32",SRDX[0],S(16),BIAS); P.s("s_subb_u32",SRDX[1],S(17),0); P.s("s_mov_b32",SRDX[2],XBYTES+BIAS); P.s("s_mov_b32",SRDX[3],0x20000)
    P.s("s_mov_b32",SRDW[0],S(18)); P.s("s_mov_b32",SRDW[1],S(19)); P.s("s_mov_b32",SRDW[2],1728)
    P.s("s_lshl_b32",sT5,sI,11); P.s("s_add_u32",sT5,sT5,DWSTG)
    P.s("s_mov_b32",M0,sT5); P.dma(l16,SRDW,0); P.dma(l16,SRDW,0,1024)
    n0=t_start_dma(is3,0)
    n1=0
    if OPT.get("x1",0)==1: n1=t_start_dma(is3,1)
    P.flush(False)
    if not OPT.get("belate"): barrier("BE")
    P.s("s_mov_b32",SRDO[0],S(24)); P.s("s_mov_b32",SRDO[1],S(25)); P.s("s_mov_b32",SRDO[2],XBYTES); P.s("s_mov_b32",SRDO[3],0x20000)
    P.v("v_lshrrev_b32",g,4,vL); P.v("v_and_b32",t,15,vL); P.v("v_lshlrev_b32",sh,2,t)
    P.v("v_lshrrev_b32",x,3,t); P.v("v_lshlrev_b32",x,3,x); P.v("v_add_u32",x,x,t); P.v("v_lshlrev_b32",x,1,x); P.v("v_add_u32",x,sT5,x)
    taps=[[5,5,5,5],[0,1,3,4],[6,7,2,8]]
    P.v("v_lshlrev_b32",z,2,g)
    P.v("v_add_u32",wa[0],5*192,x)
    for k in (1,2):
        P.s("s_mov_b32",sT0,nib(taps[k])); P.v("v_bfe_u32",y,sT0,z,4); P.v("v_mul_u32_u24",y,192,y); P.v("v_add_u32",wa[k],x,y)
    P.v("v_and_b32",x,3,t); P.v("v_mul_u32_u24",vIDX,0x5555,x)
    P.v("v_lshrrev_b32",x,2,t); P.v("v_lshlrev_b32",vXI,2,x); P.v("v_lshl_add_u32",x,x,4,t); P.v("v_lshlrev_b32",vBP,2,x)
    P.v("v_mov_b32",vK2,f2u(1e-5/c_scale))
    for i in range(4): P.v("v_mov_b32",TONES[i],0x3f803f80)
    P.v("v_add_u32",vLO,R2,l16)
    P.s("s_mov_b64",S(88,2),1); sy_init(tSY,x)
    P.v("v_and_b32",x,1,g); P.v("v_lshlrev_b32",x,5,x); P.v("v_lshrrev_b32",y,1,g)
    if is3:
        P.v("v_lshrrev_b32",z,2,t); P.v("v_min_u32",z,2,z); P.v("v_mul_u32_u24",z,132*16,z); P.v("v_add_u32",x,x,z)
        if OPT.get("zdup",1):
            smov64(sTAB,lanemask(lambda l:(l&15) in (0,4,8))); P.v("v_mov_b32",z,0x00f00000); P.v("v_cndmask_b32",x,z,x,sTAB)
        P.v("v_mul_u32_u24",z,13*16,y); P.v("v_add_u32",vA1,x,z); P.v("v_mul_u32_u24",z,13*6*16,y); P.v("v_add_u32",vA2,x,z)
        P.v("v_add_u32",vLW,R1,l16)
        stT=(1,2)
    else:
        for k,(dst,tab) in enumerate(((sTAB,YT),(sTAB2,XT))):
            for h in range(2):
                vals=[(tab[T]>>(32*h))&0xffffffff for T in range(3)]
                P.s("s_mov_b32",dst[h],vals[0]); P.s("s_cmp_eq_u32",sI,1); P.s("s_cselect_b32",dst[h],vals[1],dst[h])
                P.s("s_cmp_eq_u32",sI,2); P.s("s_cselect_b32",dst[h],vals[2],dst[h])
        tok_extract(py,px,sh)
        P.v("v_mul_u32_u24",z,9,py); P.v("v_add_u32",z,z,px); P.v("v_mul_u32_u24",z,13*16,z); P.v("v_add_u32",x,x,z)
        P.v("v_mul_u32_u24",z,13*16,y); P.v("v_add_u32",vA1,x,z); P.v("v_mul_u32_u24",z,13*18*16,y); P.v("v_add_u32",vA2,x,z)
        P.s("s_mul_i32",sT0,sI,3072); P.s("s_add_u32",sT0,sT0,R1); P.v("v_add_u32",vLW,sT0,l16)
        P.s("s_mul_i32",sT0,sI,1024); P.s("s_add_u32",sT0,sT0,R1); P.v("v_add_u32",vLX,sT0,l16)
        stT=(0,1)
    t_init_state(is3)
    P.v("v_lshlrev_b32",u,4,g)
    if not is3:
        P.s("s_lshl_b32",sT0,sI,6); P.v("v_add_u32",u,sT0,u)
    for k,T in enumerate(stT):
        smov64(sTAB,YT[T]); smov64(sTAB2,XT[T]); tok_extract(py,px,sh)
        P.v("v_mul_u32_u24",x,ROWB,py); P.v("v_mul_u32_u24",y,192,px); P.v("v_add3_u32",vST[k],x,y,u)
    if not is3:
        P.v("v_add_u32",x,XTOK[0]*ROWB+XTOK[1]*192,u); P.v("v_or_b32",y,INV,x)
        smov64(sTAB,lanemask(lambda l:(l&15) in (0,4,8)))
        P.v("v_cndmask_b32",vXSB,y,x,sTAB)
    P.v("v_and_b32",x,1,t); P.v("v_lshlrev_b32",x,4,x); P.v("v_mov_b32",y,0x3f80); P.v("v_lshlrev_b32",y,x,y)
    for e in range(2):
        for k in range(4):
            smov64(sTAB,lanemask(lambda l:((l>>4)&1)==e and (l>>5)==((l&15)>>3) and ((l&7)>>1)==k))
            P.v("v_cndmask_b32",PERM(e)[k],0,y,sTAB)
    r=V(243); c_=V(244)
    P.v("v_lshrrev_b32",r,2,t); P.v("v_and_b32",c_,3,t); P.v("v_lshlrev_b32",c_,4,c_)
    if is3: P.v("v_add_u32",c_,WOSTG,c_)
    else:
        P.s("s_lshl_b32",sT0,sI,6); P.s("s_add_u32",sT0,sT0,WOSTG); P.v("v_add_u32",c_,sT0,c_)
    P.v("v_lshl_add_u32",z,g,2,r); P.v("v_mul_u32_u24",z,192,z); P.v("v_add_u32",WO(0,0,0)[0],z,c_)
    P.v("v_lshrrev_b32",z,1,r); P.v("v_mul_u32_u24",z,24,z); P.v("v_and_b32",u,1,r); P.v("v_lshl_add_u32",u,g,1,u); P.v("v_add3_u32",z,z,u,16)
    P.v("v_mul_u32_u24",z,192,z); P.v("v_add_u32",WO(0,0,0)[1],z,c_)
    if OPT.get("x1",0)==2: n1=t_start_dma(is3,1)
    for k in range(4): smov64(MK[k],lanemask(lambda l:((l>>4)&1)==((l&15)>>3) and ((l&7)>>1)==k))
    for k in range(4): smov64(MK[4+k],lanemask(lambda l:((l&15)>>2)==k))
    smov64(sTAB2,lanemask(lambda l:l<32))
    P.flush(False)
    if OPT.get("fine"): stamp()
    P.waitv(n0+n1)
    if OPT.get("fine"): stamp()
    for c in range(6):
        for k in range(3): P.dsr("ds_read_u16",CW(c,k)[3],wa[k],16*CH0[c])
    for c in range(6):
        w=CW(c,0)[3]
        P.v("v_lshlrev_b32",z,x,w); P.v("v_cndmask_b32",z,z,y,sTAB2)
        for k in range(4): P.v("v_cndmask_b32",CW(c,0)[k],0,z,MK[k])
        for kk in (1,2):
            for k in range(4): P.v("v_cndmask_b32",CW(c,kk)[k],0,CW(c,kk)[3],MK[4+k])
    for r in range(4): smov64(MK[r],lanemask(lambda l:(l&3)==r))
    P.flush(False)
    if OPT.get("fine"): stamp()
    if OPT.get("belate"): barrier("BE")
    P.waitv(n1)
    spin_sync(4,x,y,"T3" if is3 else "Ti")
    if OPT.get("fine"): stamp()

def t_wo_reads(is3):
    a1=vTT; a2=vT
    P.v("v_mov_b32",a1,WO(0,0,0)[0]); P.v("v_mov_b32",a2,WO(0,0,0)[1])
    for j in range(3 if is3 else 1):
        for e in range(2):
            for p in range(3):
                for hh in range(2):
                    if p<2: P.dsr("ds_read_b64_tr_b16",WO(j,e,p)[2*hh:2*hh+2],a1,24*(2*p+hh)*192+8*e+64*j)
                    else: P.dsr("ds_read_b64_tr_b16",WO(j,e,p)[2*hh:2*hh+2],a2,48*hh*192+8*e+64*j)
    P.flush(False); P.waitl0()

def ti_pools():
    return Pool([V(100,4),V(104,4)]), Pool([V(108+8*i,8) for i in range(4)])
TI_REGS=[([V(228+4*p,4) for p in range(3)],V(252,4),[V(144,4),V(100,4)]),
         ([V(240+4*p,4) for p in range(3)],V(140,4),[V(104,4),V(108,4)]),
         ([V(112+4*p,4) for p in range(3)],V(124,4),[V(128,4),V(132,4)])]
def t_chkA(dep=None):
    P.s("s_add_u32",sTA,sTA,0x01010101)
    sy_poll(tSY,tPL,CA,deps=(dep,) if dep else ()); sy_check(tSY,tPL,CA,sTA,"OKA")
def t_begin(first=False):
    if not first:
        P.s("s_add_u32",sTT,sTT,4*FLAG)
        sy_wait(tSY,tPL,CT,sTT)
def t_end(vm):
    if vm is not None: P.waitv(vm)
    sy_signal(tSY,CT); P.flush(False)
    if OPT["stamps"]==1: stamp()
def ti_units(s,units,dep=None):
    slot=(s+2)%3
    for k,T in enumerate(units):
        ob,xb,acc=TI_REGS[k]
        if T=="x":
            for p in range(3): P.dsr("ds_read_b128",ob[p],vLO,OX+1024*p,mem={"OKA"})
            P.dsr("ds_read_b128",xb,vLXX,0)
            P.v("v_add_u32",vLXX,sDX,vLXX); P.s("s_sub_i32",sDX,0,sDX)
            P.s("s_add_u32",sL3,sK,5); P.s("s_lshl_b32",sL3,sL3,2); P.v("v_add_u32",vXS,sL3,vXI)
            P.bperm(vXS,vXS,vTAB)
            P.v("v_and_b32",vXS,0x7fffffc0,vXS); P.v("v_add_u32",vXS,vXS,vXSB)
        else:
            for p in range(3): P.dsr("ds_read_b128",ob[p],vLO,OS[slot]+3072*T+1024*p,mem={"OKA"})
            P.dsr("ds_read_b128",xb,vLX,XBS[slot]+3072*T)
    for k,T in enumerate(units):
        ob,xb,acc=TI_REGS[k]
        if T=="x":
            P.s("s_mov_b32",SRDO[2],XBYTES)
            t_unit(0,ob,xb,acc,vXS,0,0,dep)
            t_store_setup()
        else:
            if k==0: t_store_setup()
            t_unit(0,ob,xb,acc,vST[T],sOFFS,0,dep)
    return len(units)*(2 if OPT.get("st2") else 1)
TI_UNITS=OPT.get("tiu",[["x",0],[0,1],[0,1]])
def t_prio(start,n):
    if n is None: return
    seg=P.out[start:]; idx=[k for k,i in enumerate(seg) if i.kind in MF]
    if len(idx)<=n: return
    seg.insert(idx[n]+1,Ins(f"s_setprio {OPT['prioT']}","other"))
    seg.insert(idx[0],Ins("s_setprio 0","other"))
    P.out[start:]=seg
def ti_step(s,conv=True,units=True,dma=True,xbw=True):
    nd=0; ns=0; st0=len(P.out)
    if dma: t_dma_prep()
    if dma: nd+=t_dma_rows(False,(s+1)%3,deps=(None,None))
    if xbw: t_xbw(vLW,XBS[(s+1)%3])
    if OPT.get("tptest") and conv and units:
        if dma and s==2: nd+=t_dma_xx(None)
        t_chkA(None)
        global TI_REGS
        sv=TI_REGS
        TI_REGS=[([V(228+4*p,4) for p in range(3)],V(252,4),[V(144,4),V(196,4)]),([V(240+4*p,4) for p in range(3)],V(140,4),[V(200,4),V(144,4)])]
        ns+=ti_units(s,TI_UNITS[s],None); TI_REGS=sv
        t_ln(vLW,HS[(s+2)%3])
        p4,p8=ti_pools(); t_conv(XSL[(s+2)%3],117,p4,p8)
    else:
        if conv:
            p4,p8=ti_pools()
            t_conv(XSL[(s+2)%3],117,p4,p8)
        if dma and s==2: nd+=t_dma_xx("GAP" if conv else None)
        if units:
            t_chkA(f"CV{OPT.get('cvpoll',4)}" if conv else None)
            ns+=ti_units(s,TI_UNITS[s],"LNGO" if (conv and OPT.get("lngo",1)) else None)
        if conv: t_ln(vLW,HS[(s+2)%3])
    if OPT.get("noT"): P.cur=[i for i in P.cur if i.kind in OPT["noT"]]; P.last_len=0; nd=0; ns=0
    P.s("s_add_i32",sK,sK,1)
    P.excl=bool(TEXCL and conv and units); P.flush(True,mf_gap=OPT["gapT"]); P.excl=False
    if conv and units: t_prio(st0,OPT.get("lowN"))
    if conv and units: add_marks(st0,[nth(MF,0),nth(("smfmac",),-1),nth(("trans",),0),nth(MF,-1),nth(("dsw",),-1)],s)
    return nd,ns

def t3_tile(T,slot,regs,dep=None):
    ob,xbs,accs=regs
    for p in range(3): P.dsr("ds_read_b128",ob[p],vLO,OS[slot]+3072*T+1024*p,mem={"OKA"})
    for j in range(3): P.dsr("ds_read_b128",xbs[j],vLW,XBS[slot]+3072*T+1024*j)
    for j in range(3): t_unit(j,ob,xbs[j],accs.get(),vST[T-1],sOFFS,64*j,dep)
    return 3*(2 if OPT.get("st2") else 1)
def t3_regs():
    ac=Pool([[V(184,4),V(188,4)],[V(192,4),V(196,4)],[V(200,4),V(252,4)]])
    return ([V(160+4*p,4) for p in range(3)],[V(172+4*j,4) for j in range(3)],ac),([V(228+4*p,4) for p in range(3)],[V(240+4*j,4) for j in range(3)],ac)
def t3_convx_a():
    p4=Pool([V(252,4)]); p8=Pool([V(228+8*i,8) for i in range(3)])
    t_conv(XX,39,p4,p8)
    t_xbw(vLXX,0)
    P.v("v_add_u32",vLXX,sDX,vLXX); P.s("s_sub_i32",sDX,0,sDX)
T3_TILES=OPT.get("t3t",[[1,2],[2],[2]])
def t3_step(s,conv=True,units=True,dma=True,xbw=True):
    nd=0; ns=0; st0=len(P.out)
    if dma: t_dma_prep(); nd+=t_dma_rows(True,(s+1)%3)
    slot=(s+2)%3
    if units: t_store_setup()
    A,B=t3_regs()
    if s==1 and conv:
        t3_convx_a()
        ac=Pool([[V(184,4),V(188,4)],[V(192,4),V(196,4)],[V(200,4),V(252,4)]])
        if units: t_chkA("CV4"); ns+=t3_tile(2,slot,(B[0],B[1],ac),"LNGO" if OPT.get("lngo",1) else None)
        t_ln(vLW,HX)
    elif units:
        t_chkA("VM" if dma else None)
        for T,R in zip(T3_TILES[s],(A,B)): ns+=t3_tile(T,slot,R)
    if OPT.get("noT"): P.cur=[i for i in P.cur if i.kind in OPT["noT"]]; P.last_len=0; nd=0; ns=0
    P.s("s_add_i32",sK,sK,1)
    P.excl=bool(TEXCL and conv and units); P.flush(True,mf_gap=OPT["gapT"]); P.excl=False
    if conv and units: t_prio(st0,OPT.get("lowN3"))
    if conv and units: add_marks(st0,[nth(MF,0),nth(("dma",),-1),nth(MF,11),nth(MF,-1),nth(("vst",),-1)],s)
    return nd,ns

P.max_lds=OPT.get("maxldsT",12); P.LDS_LAT=OPT.get("latT",OPT["lat"]); TEXCL=OPT.get("excl",0)
P.label("L_T")
P.s("s_cmp_eq_u32",sWV,7); P.flush(False); P.branch("s_cbranch_scc1","L_T3")
for is3 in (False,True):
    nm="T3" if is3 else "Ti"
    if is3: P.label("L_T3")
    vSTAMP[0]=V(213); stamp()
    if OPT["prioT"]: P.raw(f"s_setprio {OPT['prioT']}")
    t_prologue(is3)
    if OPT.get("fast0",1):
        ml=P.max_lds; P.max_lds=15
        nx=2 if OPT.get("x1",0) else 1
        P.s("s_mov_b32",sK,nx-4); t_dma_prep()
        p4=Pool([V(228+4*i,4) for i in range(6)]); p8=Pool([V(80+8*i,8) for i in range(8)])
        def mid0():
            df=OPT["dmafirst"]; OPT["dmafirst"]=0
            t_dma_rows(is3,nx,deps=("GAP","GAP","GAP")); OPT["dmafirst"]=df
        MID.append(mid0)
        if is3:
            t_conv(XX,39,p4,p8); t_xbw(vLXX,0); P.v("v_add_u32",vLXX,sDX,vLXX); P.s("s_sub_i32",sDX,0,sDX); t_ln(vLW,HX)
        else:
            t_conv(XSL[0],117,p4,p8); t_ln(vLW,HS[0])
        P.flush(True); P.max_lds=ml
        if nx==1: t_start_dma(is3,2); P.flush(False)
        P.waitl0()
        P.branch("s_branch",f"L_{nm}join")
    P.label(f"L_{nm}start")
    if not OPT.get("x1",0): t_start_dma(is3,1); P.flush(False)
    n2=t_start_dma(is3,2,late=not OPT.get("x2early"))
    if OPT.get("x2early"): P.flush(False)
    def mid():
        if LATE: t_late()
    MID.append(mid)
    if is3: t3_convx_a(); t_ln(vLW,HX)
    else:
        p4,p8=ti_pools(); t_conv(XSL[0],117,p4,p8); t_ln(vLW,HS[0])
    P.flush(True); P.waitl0()
    P.label(f"L_{nm}join")
    P.s("s_mov_b32",sK,-1); P.s("s_mov_b32",sG,0); P.flush(False)
    barrier("B1",n2)
    step=t3_step if is3 else ti_step
    def wo_dma():
        P.v("v_subrev_u32",vTT,R2,vLO)
        P.s("s_mov_b32",SRDW[0],S(22)); P.s("s_mov_b32",SRDW[1],S(23))
        P.s("s_cmp_eq_u32",sMODE,0); P.s("s_cselect_b32",SRDW[2],18432,0)
        for n in range(18):
            P.s("s_mov_b32",M0,WOSTG+1024*n); P.s("s_movk_i32",sT2,1024*n); P.dma(vTT,SRDW,sT2)
        P.flush(False)
    def wo_rd():
        P.s("s_cmp_lg_u32",sMODE,0); P.flush(False); P.branch("s_cbranch_scc1",f"L_{nm}nowo")
        t_wo_reads(is3)
        P.label(f"L_{nm}nowo")
    P.s("s_mov_b32",sTT,0); P.s("s_mov_b32",sTA,0x7f7f7f80); P.flush(False)
    if is3: wo_dma()
    nd,ns=step(2,units=False); t_end(nd)
    t_begin()
    if OPT["stamps"]==3: stamp()
    wo_rd()
    nd,ns=step(0,units=False); t_end(nd)
    P.label(f"L_{nm}loop")
    t_begin(); nd,ns1=step(1); t_end(0+nd+ns1)
    t_begin(); nd,ns2=step(2); t_end(ns1+nd+ns2)
    t_begin(); nd,ns0=step(0); t_end(ns2+nd+ns0)
    P.s("s_add_u32",sG,sG,1); P.s("s_cmp_lt_u32",sG,6); P.flush(False); P.branch("s_cbranch_scc1",f"L_{nm}loop")
    t_begin(); step(1,conv=False,dma=False); t_end(None)
    t_begin(); step(2,conv=False,dma=False,xbw=False); t_end(None)
    t_chkA()
    if is3:
        t_store_setup(); A,B=t3_regs(); t3_tile(2,2,A)
    else: ti_units(0,["x",0,1])
    P.v("v_mov_b32",vTT,FLAG)
    P.flush(True)
    P.barrier()
    P.dsr("ds_read_b32",vT,vTT,0); P.v("v_cmp_ne_u32",VCC,0,vT); P.s("s_cmp_lg_u32",sMODE,0); P.flush(False)
    P.branch("s_cbranch_scc1",f"L_{nm}end")
    P.branch("s_cbranch_vccz",f"L_{nm}end")
    st=OPT["stamps"]; OPT["stamps"]=0
    P.s("s_mov_b32",sMODE,1); P.flush(False); P.waitv(0)
    t_start_dma(is3,0)
    if OPT.get("x1",0): t_start_dma(is3,1)
    t_init_state(is3); P.flush(False)
    P.barrier(0)
    P.branch("s_branch",f"L_{nm}start")
    OPT["stamps"]=st
    P.label(f"L_{nm}end")
    stamp_end()
    P.raw("s_endpgm"); P.flush(False)
    sy_slow()

P.label("L_end")
P.raw("s_endpgm"); P.flush(False)
P.label("L_hotend")
emit_safe()

body=P.text()
hdr=open("standalone__window_attn_davit__vision.s.ref").read().split("\n")
lines=[l for l in hdr if l.startswith(";") and "@launch" not in l and not l.startswith("; Override") and not l.startswith("; grid=ceil")]
txt="\n".join(lines)+f"\n; @launch grid=(256,1,1) block=(512,1,1) lds={LDS_TOTAL}\n"
txt+=f""".amdgcn_target "amdgcn-amd-amdhsa--gfx950"
.text
.globl {KN}
.p2align 8
.type {KN},@function
{body}.section .rodata,"a"
.p2align 6
.amdhsa_kernel {KN}
  .amdhsa_next_free_vgpr 256
  .amdhsa_next_free_sgpr 96
  .amdhsa_accum_offset 256
  .amdhsa_group_segment_fixed_size 0
  .amdhsa_kernarg_size 56
  .amdhsa_user_sgpr_count 2
  .amdhsa_user_sgpr_kernarg_segment_ptr 1
  .amdhsa_system_sgpr_workgroup_id_x 1
.end_amdhsa_kernel
"""
open(OUT,"w").write(txt)
import collections
cnt=collections.Counter(i.kind for i in P.final)
print("instr kinds:",dict(cnt))
for i in P.final:
    if i.tag=="comment": print(i.text)
```
